```python
import torch

def _softmax(x, axis=-1):
    return torch.softmax(x, dim=axis)
def _gelu(x):
    return torch.nn.functional.gelu(x, approximate="tanh")
def _silu(x):
    return torch.nn.functional.silu(x)
def _sigmoid(x):
    return torch.sigmoid(x)
def _layernorm(x, axis=-1, eps=1e-5):
    m = x.mean(dim=axis, keepdim=True)
    v = x.var(dim=axis, keepdim=True, unbiased=False)
    return (x - m) / torch.sqrt(v + eps)
def _scatter_add(tgt, idx, src, axis=0):
    return tgt.clone().index_add_(axis, idx, src)
def _segment_sum(src, seg, n):
    out = torch.zeros((n,) + src.shape[1:], dtype=src.dtype)
    return out.index_add_(0, seg, src)
def _pad(x, pw):
    flat = tuple(v for pair in reversed(pw) for v in pair)
    return torch.nn.functional.pad(x, flat)

kernel_name = 'interleave_layers__linear_attn_block__dense_activation_relu__prompt'

def setup_inputs():

    _w = (lambda a: (lambda t: t.to(torch.bfloat16) if t.is_floating_point() else t)(torch.as_tensor(a)))
    def _A_setup():
        B, S, D = 1, 2048, 512
        return {
            "x": _w((lambda *s: torch.randn(*s, dtype=torch.bfloat16) * 0.05)(B, S, D)),
            "wqkv": _w((lambda *s: torch.randn(*s, dtype=torch.bfloat16) * 0.05)(D, 3 * D)),
            "wo": _w((lambda *s: torch.randn(*s, dtype=torch.bfloat16) * 0.05)(D, D)),
        }
    _A_in = _A_setup()

    def _B_setup():
        B, S, D, Dff = 1, 2048, 512, 1792
        return {
            "x": _w((lambda *s: torch.randn(*s, dtype=torch.bfloat16) * 0.05)(B, S, D)),
            "w1": _w((lambda *s: torch.randn(*s, dtype=torch.bfloat16) * 0.05)(D, Dff)),
            "w2": _w((lambda *s: torch.randn(*s, dtype=torch.bfloat16) * 0.05)(Dff, D)),
        }
    _B_in = _B_setup()

    return {
        "A_x": _A_in["x"],
        "A_wqkv": _A_in["wqkv"],
        "A_wo": _A_in["wo"],
        "B_x": _B_in["x"],
        "B_w1": _B_in["w1"],
        "B_w2": _B_in["w2"],
    }

def reference(A_x, A_wqkv, A_wo, B_x, B_w1, B_w2):
    def _A_ref(x, wqkv, wo):
        B, S, D = x.shape
        H = 32; Dh = D // H
        qkv = (lambda x, *d: x.permute(*d))((x @ wqkv).reshape(B, S, 3, H, Dh), 2, 0, 3, 1, 4)
        q, k, v = qkv[0], qkv[1], qkv[2]
        phi = lambda t: torch.where(t > 0, t + 1, torch.exp(t)) + 1e-6
        pq, pk = phi(q), phi(k)
        kv = torch.einsum("bhsd,bhse->bhde", pk, v)
        z = torch.einsum("bhsd->bhd", pk)
        num = torch.einsum("bhqd,bhde->bhqe", pq, kv)
        den = torch.einsum("bhqd,bhd->bhq", pq, z)[..., None] + 1e-6
        o = num / den
        return (lambda x, *d: x.permute(*d))(o, 0, 2, 1, 3).reshape(B, S, D) @ wo

    def _B_ref(x, w1, w2):
        h = torch.einsum("bsd,df->bsf", x, w1)
        zero = torch.zeros_like(h)
        h = torch.maximum(h, zero)
        return torch.einsum("bsf,fd->bsd", h, w2)

    x = A_x
    x = x + _A_ref(_layernorm(x, axis=-1), A_wqkv, A_wo)
    x = x + _B_ref(_layernorm(x, axis=-1), B_w1, B_w2)
    x = x + _A_ref(_layernorm(x, axis=-1), A_wqkv, A_wo)
    x = x + _B_ref(_layernorm(x, axis=-1), B_w1, B_w2)
    return x
```

```python
import re

REG_RE = re.compile(r'^(-|\|)?([vas])(?:(\d+)|\[(\d+):(\d+)\])\|?$')
TRANS = ('v_exp_f32', 'v_rcp_f32', 'v_rsq_f32', 'v_log_f32', 'v_sqrt_f32', 'v_sin_f32', 'v_cos_f32')


def regs_of(tok):
    tok = tok.strip()
    m = re.match(r'^(?:neg|abs)\((.*)\)$', tok)
    if m:
        tok = m.group(1)
    if tok in ('vcc',):
        return {('s', 106), ('s', 107)}
    if tok == 'vcc_lo':
        return {('s', 106)}
    if tok == 'vcc_hi':
        return {('s', 107)}
    if tok == 'exec':
        return {('s', 126), ('s', 127)}
    if tok == 'm0':
        return {('s', 124)}
    m = REG_RE.match(tok)
    if not m:
        return set()
    f = m.group(2)
    if m.group(3) is not None:
        return {(f, int(m.group(3)))}
    return {(f, i) for i in range(int(m.group(4)), int(m.group(5)) + 1)}


def split_ops(s):
    ops, depth, cur = [], 0, ''
    for ch in s:
        if ch in '[(':
            depth += 1
        elif ch in '])':
            depth -= 1
        if ch == ',' and depth == 0:
            ops.append(cur.strip())
            cur = ''
        else:
            cur += ch
    if cur.strip():
        ops.append(cur.strip())
    out, mods = [], []
    for o in ops:
        parts = o.split()
        out.append(parts[0])
        mods += parts[1:]
    return out, mods


class Ins:
    def __init__(self, text):
        self.text = text
        t = text.split(';')[0].strip()
        self.label = None
        self.kind = 'other'
        self.dst = set()
        self.src = set()
        self.target = None
        self.ws = 1
        if t.endswith(':'):
            self.label = t[:-1]
            self.kind = 'label'
            self.ws = 0
            return
        if t.startswith('.') or not t:
            self.kind = 'dir'
            self.ws = 0
            return
        sp = t.split(None, 1)
        mn = sp[0]
        self.mn = mn
        ops, mods = split_ops(sp[1]) if len(sp) > 1 else ([], [])
        self.ops, self.mods = ops, mods
        R = [regs_of(o) for o in ops]
        base = re.sub(r'_(e32|e64|dpp|sdwa)$', '', mn)
        self.base = base
        if mn.startswith('v_mfma'):
            self.kind = 'mfma'
            self.passes = 8 if '32x32x16' in mn else 4
            assert '32x32x16' in mn or '16x16x32' in mn, mn
            self.dst = R[0]
            self.A, self.B, self.C = R[1], R[2], R[3]
            self.src = R[1] | R[2] | R[3]
        elif mn.startswith('v_'):
            self.kind = 'valu'
            self.trans = base in TRANS
            self.dot = base.startswith('v_dot')
            self.dpp = mn.endswith('_dpp') or any(m.startswith(('row_', 'quad_perm')) for m in mods)
            self.perm = base.startswith('v_permlane')
            self.rdlane = base in ('v_readfirstlane_b32', 'v_readlane_b32')
            if self.perm:
                self.dst = R[0] | R[1]
                self.src = R[0] | R[1]
            elif base in ('v_add_co_u32', 'v_sub_co_u32', 'v_addc_co_u32', 'v_subb_co_u32'):
                self.dst = R[0] | R[1]
                self.src = set().union(*R[2:])
            else:
                self.dst = R[0]
                self.src = set().union(*R[1:]) if len(R) > 1 else set()
                if base.startswith(('v_fmac', 'v_dot2c', 'v_writelane')):
                    self.src |= R[0]
        elif mn.startswith('ds_'):
            self.kind = 'ds'
            if mn.startswith('ds_read'):
                self.dst = R[0]
                self.src = set().union(*R[1:])
            else:
                self.src = set().union(*R)
        elif mn.startswith(('buffer_', 'global_')):
            self.kind = 'vmem'
            self.lds = 'lds' in mods or '_lds_' in mn
            self.widestore = None
            if mn in ('buffer_wbl2', 'buffer_inv'):
                pass
            elif 'load' in mn and not self.lds:
                self.dst = R[0]
                self.src = set().union(*R[1:])
            else:
                self.src = set().union(*R)
                if 'store' in mn and ('x3' in mn or 'x4' in mn):
                    self.widestore = R[0] if mn.startswith('buffer_') else R[1]
            if self.lds:
                self.src |= {('s', 124)}
        elif mn == 's_nop':
            self.kind = 'nop'
            self.ws = int(ops[0], 0) + 1
        elif mn.startswith('s_cbranch') or mn == 's_branch':
            self.kind = 'branch'
            self.target = ops[0]
            self.uncond = mn == 's_branch'
        elif mn == 's_endpgm':
            self.kind = 'end'
        elif mn.startswith('s_'):
            self.kind = 'salu'
            if mn.startswith(('s_cmp', 's_waitcnt', 's_barrier', 's_sleep', 's_setprio', 's_bitcmp')):
                self.src = set().union(*R) if R else set()
            else:
                self.dst = R[0] if R else set()
                self.src = set().union(*R[1:]) if len(R) > 1 else set()
        else:
            raise ValueError('unknown instr ' + text)


def vonly(s):
    return {r for r in s if r[0] in 'va'}


def sonly(s):
    return {r for r in s if r[0] == 's'}


def need(p, c):
    n = 0
    pk, ck = p.kind, c.kind
    if pk == 'valu':
        pv, ps = vonly(p.dst), sonly(p.dst)
        if ck == 'mfma' and pv & c.src:
            n = max(n, 3 if p.dot else 2)
        if ck == 'valu':
            if p.trans and not c.trans and pv & c.src:
                n = max(n, 1)
            if p.trans and c.trans and pv & c.src:
                n = max(n, 1)
            if c.perm and pv & c.src:
                n = max(n, 2)
            if c.dpp and pv & c.src:
                n = max(n, 2)
            if c.rdlane and pv & c.src:
                n = max(n, 1)
            if ps & c.src:
                n = max(n, 4 if (c.rdlane or c.base.startswith('v_writelane')) else 2)
            if p.dot and pv & (c.src | c.dst):
                if c.dot and c.base == p.base and not (pv & (set().union(*[regs_of(o) for o in c.ops[1:3]]))):
                    pass
                else:
                    n = max(n, 3)
        if ck in ('vmem', 'ds') and p.dot and pv & c.src:
            n = max(n, 3)
        if ck in ('vmem', 'ds') and p.trans and pv & c.src:
            n = max(n, 1)
        if ck == 'vmem' and ps & c.src:
            n = max(n, 5)
        if ck == 'salu' and ps & c.src:
            n = max(n, 1)
    elif pk == 'mfma':
        big = 12 if p.passes == 8 else 8
        if ck == 'mfma':
            if p.dst & (c.A | c.B):
                n = max(n, big)
            if p.dst & c.C:
                if p.dst == c.C and p.passes == c.passes:
                    pass
                else:
                    n = max(n, 10 if p.passes == 8 else 6)
            elif p.dst & c.dst:
                n = max(n, big)
        elif ck == 'valu':
            if p.dst & (c.src | c.dst):
                n = max(n, big)
            if p.C & c.dst:
                n = max(n, 7 if p.passes == 8 else 3)
        elif ck in ('vmem', 'ds'):
            if p.dst & (c.src | c.dst):
                n = max(n, big)
    elif pk == 'salu':
        if ('s', 124) in p.dst and ck == 'vmem' and c.lds:
            n = max(n, 1)
    elif pk == 'vmem':
        if p.widestore and p.widestore & c.dst:
            n = max(n, 2 if ck in ('valu', 'mfma') else 1)
    return n


class Asm:
    def __init__(self):
        self.ins = []
        self.vmq = []
        self.lgq = []
        self.nlabel = 0

    def raw(self, text):
        for ln in text.split('\n'):
            self.ins.append(Ins(ln))

    def __call__(self, text, tag=None):
        for ln in text.split('\n'):
            ln = ln.strip()
            if not ln:
                continue
            i = Ins(ln)
            self.ins.append(i)
            if i.kind == 'vmem':
                self.vmq.append(tag)
            elif i.kind == 'ds':
                self.lgq.append(tag)

    def label(self, name=None):
        if name is None:
            name = self.newlabel()
        self.ins.append(Ins(name + ':'))
        return name

    def newlabel(self):
        self.nlabel += 1
        return 'L%d' % self.nlabel

    @staticmethod
    def _cnt(q, tag):
        idx = [k for k, t in enumerate(q) if t == tag]
        if not idx:
            return None
        return len(q) - 1 - idx[-1]

    def wait(self, vm=None, lg=None):
        parts = []
        for q, tag, name, mx in ((self.vmq, vm, 'vmcnt', 63), (self.lgq, lg, 'lgkmcnt', 15)):
            if tag is None:
                continue
            if tag == 'all':
                n = 0
            else:
                tags = tag if isinstance(tag, list) else [tag]
                ns = [self._cnt(q, t) for t in tags]
                ns = [x for x in ns if x is not None]
                if not ns:
                    continue
                n = min(ns)
            n = min(n, mx)
            del q[:len(q) - n]
            parts.append('%s(%d)' % (name, n))
        if parts:
            self.ins.append(Ins('s_waitcnt ' + ' '.join(parts)))

    def pad_hazards(self):
        changed = True
        total = 0
        while changed:
            changed = False
            ins = self.ins
            lab = {i.label: k for k, i in enumerate(ins) if i.kind == 'label'}
            jumps = {}
            for k, i in enumerate(ins):
                if i.kind == 'branch':
                    jumps.setdefault(lab[i.target], []).append(k)
            out = []
            for k, c in enumerate(ins):
                if c.kind in ('valu', 'mfma', 'vmem', 'ds', 'salu'):
                    deficit = 0
                    stack = [(k, 0)]
                    seen = set()
                    while stack:
                        pos, d = stack.pop()
                        preds = []
                        if pos > 0:
                            q = ins[pos - 1]
                            if not (q.kind == 'end' or (q.kind == 'branch' and q.uncond)):
                                preds.append(pos - 1)
                        if ins[pos].kind == 'label':
                            preds += jumps.get(pos, [])
                        for pp in preds:
                            if (pp, d) in seen:
                                continue
                            seen.add((pp, d))
                            p = ins[pp]
                            if p.kind in ('valu', 'mfma', 'salu', 'vmem'):
                                deficit = max(deficit, need(p, c) - d)
                            nd = d + p.ws
                            if nd < 12:
                                stack.append((pp, nd))
                    if deficit > 0:
                        out.append(Ins('s_nop %d' % (deficit - 1)))
                        total += deficit
                        changed = True
                        out += ins[k:]
                        break
                out.append(c)
            self.ins = out
        return total

    def pad_hazards_fast(self):
        total = 0
        k = 0
        ins = self.ins
        for sweep in range(3):
            k = 0
            added = 0
            while k < len(ins):
                c = ins[k]
                if c.kind in ('valu', 'mfma', 'vmem', 'ds', 'salu'):
                    deficit = self._deficit(k)
                    if deficit > 0:
                        ins.insert(k, Ins('s_nop %d' % (deficit - 1)))
                        self._cfg = None
                        added += deficit
                        k += 1
                k += 1
            total += added
            if not added:
                break
        return total

    _cfg = None

    def _deficit(self, k):
        ins = self.ins
        c = ins[k]
        deficit = 0
        stack = [(k, 0)]
        seen = set()
        while stack:
            pos, d = stack.pop()
            preds = []
            if pos > 0:
                q = ins[pos - 1]
                if not (q.kind == 'end' or (q.kind == 'branch' and q.uncond)):
                    preds.append(pos - 1)
            if ins[pos].kind == 'label':
                nm = ins[pos].label
                preds += [x for x, i in enumerate(ins) if i.kind == 'branch' and i.target == nm]
            for pp in preds:
                if (pp, d) in seen:
                    continue
                seen.add((pp, d))
                p = ins[pp]
                if p.kind in ('valu', 'mfma', 'salu', 'vmem'):
                    deficit = max(deficit, need(p, c) - d)
                nd = d + p.ws
                if nd < 12:
                    stack.append((pp, nd))
        return deficit

    def text(self):
        out = []
        for i in self.ins:
            if i.kind in ('label', 'dir'):
                out.append(i.text)
            else:
                out.append('  ' + i.text)
        return '\n'.join(out) + '\n'


def vr(b, n=1):
    return 'v%d' % b if n == 1 else 'v[%d:%d]' % (b, b + n - 1)


def ar(b, n=1):
    return 'a%d' % b if n == 1 else 'a[%d:%d]' % (b, b + n - 1)


def sr(b, n=1):
    return 's%d' % b if n == 1 else 's[%d:%d]' % (b, b + n - 1)
```

```python
import sys
from asmfw import Asm, vr, ar, sr

KNAME = 'interleave_layers__linear_attn_block__dense_activation_relu__prompt_kernel'

OPT = dict(stamps=0, force_slow=0, sep=0, stop=99)
for a in sys.argv[2:]:
    k, v = a.split('=')
    OPT[k] = int(v)

KVP_RS = 1152
KVP = 0
FLB = 0x120000
XT = 0x122000
KVF = 0x140000
ST1 = 0x180000
ST2 = 0x1C0000
PQ = 0x200000
X1F = 0x400000
XF = 0x600000
HF = 0x800000
STAMP = 0xF00000
LSEP = 0x1000000 if OPT['sep'] else 0
WS_BYTES = 0x2000000
XS = 98304
SCR = 114688
MISC = 147456
CR1 = MISC
CR3 = MISC + 1024
RS1 = MISC + 2048
RS3 = MISC + 2560
SLAB = MISC + 4096
SLAB_ST = 2304
LDS_BYTES = 163840
SX, SQKV, SWO, SW1, SW2, SOUT, SWS, SDBG = 4, 8, 12, 16, 20, 24, 28, 32
sW, sXCD, sU, sRBL, sJ, sRB, sRG, sCG, sSLOW = 36, 37, 38, 39, 40, 41, 42, 43, 44
sFLB, sMYFL, sMYKFL, sCNT = 45, 46, 47, 48
sEPS, sL2E = 50, 52
sMLO, sM0, sM1, sB4 = 54, 56, 58, 60
sT = 64
sTTO = 62
sROT = 63
vL, vL16, vPA, vPB, vPC, vT1L, vT1H, vT3L, vT3H, vTW0, vTW1, vWD = range(12)
vX1S, vHS, vHS1, vSTS, vSTL, vKVL, vOUT = range(12, 19)
vB1D = 19
vB3D = 22
vSTAMP, vA, vB = 29, 30, 31
vRES = 32
vWO2 = 48
vCR1, vCR3, vSC0, vSC2, vSC1, vSLW, vSLZ, vRS1R = range(80, 88)
LOC = 88

LIMIT = 200000
A = Asm()
nstamp = [0]
stamp_names = []


def srd(b):
    return sr(b, 4)


def stamp(name):
    if not OPT['stamps']:
        return
    A('s_memtime s[94:95]')
    A.raw('s_waitcnt lgkmcnt(0)')
    A.lgq.clear()
    A('v_writelane_b32 %s, s94, %d' % (vr(vSTAMP), nstamp[0]))
    stamp_names.append(name)
    nstamp[0] += 1


def mfma32(d, a, b, c):
    A('v_mfma_f32_32x32x16_bf16 %s, %s, %s, %s' % (d, a, b, c))


def mfma16(d, a, b, c):
    A('v_mfma_f32_16x16x32_bf16 %s, %s, %s, %s' % (d, a, b, c))


def barrier():
    A('s_barrier')


def poll(vaddr, epoch):
    A('s_mov_b32 s%d, 0' % sCNT)
    L = A.label()
    A('buffer_load_dword %s, %s, %s, s%d offen sc1' % (vr(vA), vr(vaddr), srd(SWS), sFLB))
    A('s_add_u32 s%d, s%d, 1' % (sCNT, sCNT))
    A('s_cmp_gt_u32 s%d, %d' % (sCNT, LIMIT))
    A('s_cbranch_scc1 Lend')
    A.wait(vm='all')
    A('v_cmp_gt_i32 vcc, %d, %s' % (epoch, vr(vA)))
    A('s_cbranch_vccnz %s' % L)
    L2 = A.newlabel()
    A('s_cmp_eq_u32 s%d, 0' % sSLOW)
    A('s_cbranch_scc1 %s' % L2)
    A.raw('buffer_inv sc1')
    A.raw('s_waitcnt vmcnt(0)')
    A.label(L2)


def publish(sflag, epoch):
    A('v_mov_b32 %s, %d' % (vr(vA), epoch))
    A.wait(vm='all')
    Ls, Le = A.newlabel(), A.newlabel()
    A('s_mov_b64 exec, 1')
    A('s_cmp_lg_u32 s%d, 0' % sSLOW)
    A('s_cbranch_scc1 %s' % Ls)
    A('buffer_store_dword %s, off, %s, s%d' % (vr(vA), srd(SWS), sflag))
    A('s_branch %s' % Le)
    A.label(Ls)
    A.raw('buffer_wbl2 sc1')
    A.raw('s_waitcnt vmcnt(0)')
    A.raw('buffer_store_dword %s, off, %s, s%d sc1' % (vr(vA), srd(SWS), sflag))
    A.label(Le)
    A('s_mov_b64 exec, -1')


def wo_frag(hh, ct):
    i = hh * 2 + ct
    return ar(224 + 4 * i, 4) if i < 8 else vr(vWO2 + 4 * (i - 8), 4)


def wo_frag_half(hh, ct, half):
    i = hh * 2 + ct
    return ar(224 + 4 * i + 2 * half, 2) if i < 8 else vr(vWO2 + 4 * (i - 8) + 2 * half, 2)


def w2_frag(ks, ct):
    return ar((ks * 2 + ct) * 4, 4)


def prologue():
    A('s_cmp_ge_u32 s2, 256')
    A('s_cbranch_scc1 Lend')
    A('s_load_dwordx16 s[64:79], s[0:1], 0')
    A('s_load_dwordx2 s[80:81], s[0:1], 64')
    A('s_getpc_b64 s[82:83]')
    A.label('Lpc')
    A('s_lshr_b32 s%d, s2, 3' % sU)
    A('s_lshl_b32 s84, s%d, 12' % sU)
    A('v_and_b32 %s, 31, v0' % vr(vA))
    A('v_lshlrev_b32 %s, 7, %s' % (vr(vA), vr(vA)))
    A('v_add_u32 %s, s84, %s' % (vr(vA), vr(vA)))
    A('v_min_u32 %s, Lend-Lpc, %s' % (vr(vA), vr(vA)))
    A('global_load_dword %s, %s, s[82:83]' % (vr(vB), vr(vA)))
    A('v_lshrrev_b32 %s, 6, v0' % vr(vA))
    A('v_and_b32 v0, 63, v0')
    A('v_readfirstlane_b32 s%d, %s' % (sW, vr(vA)))
    A('s_and_b32 s%d, s2, 7' % sXCD)
    A('s_and_b32 s%d, s%d, 1' % (sRBL, sU))
    A('s_lshr_b32 s%d, s%d, 1' % (sJ, sU))
    A('s_lshl_b32 s%d, s%d, 1' % (sRB, sXCD))
    A('s_add_u32 s%d, s%d, s%d' % (sRB, sRB, sRBL))
    A('s_and_b32 s%d, s%d, 1' % (sRG, sJ))
    A('s_lshr_b32 s%d, s%d, 1' % (sCG, sJ))
    A('s_and_b32 s%d, s%d, 3' % (sROT, sJ))
    A('v_lshlrev_b32 %s, 4, v0' % vr(vL16))
    if OPT['stamps']:
        A('v_mov_b32 %s, 0' % vr(vSTAMP))
    for i in range(3):
        d = vB1D + i
        A('v_add_u32 %s, %d, v0' % (vr(vA), 64 * i))
        A('v_mul_u32_u24 %s, 5462, %s' % (vr(d), vr(vA)))
        A('v_lshrrev_b32 %s, 16, %s' % (vr(d), vr(d)))
        A('v_mul_u32_u24 %s, 12, %s' % (vr(LOC), vr(d)))
        A('v_sub_u32 %s, %s, %s' % (vr(LOC), vr(vA), vr(LOC)))
        A('v_mul_u32_u24 %s, 3072, %s' % (vr(d), vr(d)))
        A('v_lshrrev_b32 %s, 2, %s' % (vr(LOC + 1), vr(LOC)))
        A('v_lshl_add_u32 %s, %s, 10, %s' % (vr(d), vr(LOC + 1), vr(d)))
        A('v_and_b32 %s, 3, %s' % (vr(LOC), vr(LOC)))
        A('v_lshl_add_u32 %s, %s, 4, %s' % (vr(d), vr(LOC), vr(d)))
        if i:
            A('v_subrev_u32 %s, %d, %s' % (vr(d), 1024 * i, vr(d)))
    XD = 236
    A('v_lshrrev_b32 %s, 4, v0' % vr(vA))
    A('v_and_b32 %s, 15, v0' % vr(LOC))
    A('v_xor_b32 %s, %s, %s' % (vr(LOC), vr(LOC), vr(vA)))
    A('v_lshlrev_b32 %s, 4, %s' % (vr(LOC), vr(LOC)))
    A('v_lshl_add_u32 %s, %s, 10, %s' % (vr(XD), vr(vA), vr(LOC)))
    for i in range(1, 4):
        A('v_xor_b32 %s, %d, %s' % (vr(XD + i), 64 * i, vr(XD)))
    A.raw('s_waitcnt lgkmcnt(0)')
    sizes = {SX: 2097152, SQKV: 1572864, SWO: 524288, SW1: 1835008, SW2: 1835008, SOUT: 2097152,
             SDBG: 256, SWS: WS_BYTES}
    srcs = {SX: 64, SQKV: 66, SWO: 68, SW1: 72, SW2: 74, SOUT: 76, SDBG: 78, SWS: 80}
    for b in (SWS, SX, SQKV, SWO, SW1, SW2, SOUT, SDBG):
        A('s_mov_b32 s%d, s%d' % (b, srcs[b]))
        A('s_mov_b32 s%d, s%d' % (b + 1, srcs[b] + 1))
        A('s_mov_b32 s%d, %d' % (b + 2, sizes[b]))
        A('s_mov_b32 s%d, 0x20000' % (b + 3))
    stamp('start')
    Lni = A.newlabel()
    A('s_cmp_ge_u32 s2, 64')
    A('s_cbranch_scc1 %s' % Lni)
    A('s_mul_i32 s84, s2, 20480')
    A('s_mul_i32 s85, s%d, 5120' % sW)
    A('s_add_u32 s84, s84, s85')
    A('s_add_u32 s85, s84, 4096')
    for i in range(4):
        A('v_mov_b32 %s, -1' % vr(LOC + i))
    for i in range(4):
        A.raw('buffer_store_dwordx4 %s, %s, %s, s84 offen offset:%d sc1' % (vr(LOC, 4), vr(vL16), srd(SWS), i * 1024))
    A.raw('buffer_store_dwordx4 %s, %s, %s, s85 offen sc1' % (vr(LOC, 4), vr(vL16), srd(SWS)))
    A.label(Lni)


def dma_x(q, tag):
    XD = 236
    A('s_add_u32 s84, s%d, %d' % (sROT, q))
    A('s_and_b32 s84, s84, 3')
    A('s_lshl_b32 s84, s84, 8')
    A('s_add_u32 s84, s84, s86')
    for i in range(8):
        A('s_add_u32 m0, s87, %d' % ((q & 1) * 8192 + i * 1024))
        A('s_add_u32 s85, s84, %d' % (i * 4096))
        A('buffer_load_dwordx4 %s, %s, s85 offen lds' % (vr(XD + (i & 3)), srd(SX)), tag)


def dma_b1_step(s_row, s_lds, tag):
    A('s_mov_b32 m0, %s' % s_lds)
    for i in range(3):
        A('buffer_load_dwordx4 %s, %s, %s offen offset:%d lds' % (vr(vB1D + i), srd(SQKV), s_row, i * 1024), tag)


def dma_b1_l1(q, tag):
    A('s_add_u32 s84, s%d, %d' % (sROT, q))
    A('s_and_b32 s84, s84, 3')
    A('s_lshl_b32 s84, s84, 3')
    A('s_add_u32 s84, s84, s%d' % sW)
    A('s_mul_i32 s84, s84, 49152')
    A('s_add_u32 s84, s84, s88')
    A('s_add_u32 s85, s89, %d' % (q * 8 * 3072))
    dma_b1_step('s84', 's85', tag)
    A('s_add_u32 s84, s84, %d' % (4 * 49152))
    A('s_add_u32 s85, s85, %d' % (4 * 3072))
    dma_b1_step('s84', 's85', tag)


def setup_addrs():
    t0, t1, t2, t3, t4, t5 = range(LOC, LOC + 6)
    V = vr
    A('s_mov_b32 s%d, 0x358637bd' % sEPS)
    A('s_mov_b32 s%d, 0x358637bd' % (sEPS + 1))
    A('s_mov_b32 s%d, 0x3fb8aa3b' % sL2E)
    A('s_mov_b32 s%d, 0x3fb8aa3b' % (sL2E + 1))
    A('s_mov_b32 s%d, -1' % sMLO)
    A('s_mov_b32 s%d, 0' % (sMLO + 1))
    A('s_mov_b32 s%d, 0xffff' % sM0)
    A('s_mov_b32 s%d, 0' % (sM0 + 1))
    A('s_mov_b32 s%d, 0xffff0000' % sM1)
    A('s_mov_b32 s%d, 0' % (sM1 + 1))
    A('s_mov_b32 s%d, 0xffff0000' % sB4)
    A('s_mov_b32 s%d, 0xffff0000' % (sB4 + 1))
    A('s_mov_b32 s%d, %d' % (sSLOW, OPT['force_slow']))
    A('s_lshl_b32 s%d, s%d, 10' % (sFLB, sXCD))
    A('s_add_u32 s%d, s%d, %d' % (sFLB, sFLB, FLB))
    A('s_lshl_b32 s84, s%d, 4' % sRBL)
    A('s_add_u32 s84, s84, s%d' % sJ)
    A('s_lshl_b32 s84, s84, 2')
    A('s_add_u32 s84, s84, s%d' % sW)
    A('s_lshl_b32 s84, s84, 2')
    A('s_add_u32 s%d, s%d, s84' % (sMYFL, sFLB))
    A('s_lshl_b32 s84, s%d, 2' % sU)
    A('s_add_u32 s84, s84, s%d' % sW)
    A('s_lshl_b32 s84, s84, 2')
    A('s_add_u32 s84, s84, 512')
    A('s_add_u32 s%d, s%d, s84' % (sMYKFL, sFLB))
    A('s_lshl_b32 s%d, s%d, 2' % (sTTO, sRB))
    A('s_lshl_b32 s84, s%d, 1' % sRG)
    A('s_add_u32 s%d, s%d, s84' % (sTTO, sTTO))
    A('s_lshr_b32 s84, s%d, 1' % sW)
    A('s_add_u32 s%d, s%d, s84' % (sTTO, sTTO))
    A('v_and_b32 %s, 15, v0' % V(t0))
    A('v_lshrrev_b32 %s, 4, v0' % V(t1))
    A('v_and_b32 %s, 31, v0' % V(t2))
    A('v_lshrrev_b32 %s, 5, v0' % V(t3))
    A('v_bfe_u32 %s, v0, 2, 2' % V(t4))
    A('v_and_b32 %s, 3, v0' % V(t5))
    u0, u1 = LOC + 6, LOC + 7
    A('v_bfe_u32 %s, v0, 1, 2' % V(u0))
    A('v_lshlrev_b32 %s, 4, %s' % (V(u0), V(u0)))
    A('v_and_b32 %s, 1, v0' % V(u1))
    A('v_lshl_add_u32 %s, %s, 2, %s' % (V(u0), V(u1), V(u0)))
    A('s_lshl_b32 s84, s%d, 8' % sRBL)
    A('s_lshl_b32 s85, s%d, 6' % sW)
    A('s_add_u32 s84, s84, s85')
    A('s_lshl_b32 s85, s%d, 3' % sRG)
    A('s_add_u32 s84, s84, s85')
    A('v_add_u32 %s, s84, %s' % (V(vPC), V(u0)))
    A('s_lshl_b32 s84, s%d, 7' % sW)
    A('s_add_u32 s84, s84, 512')
    A('v_lshlrev_b32 %s, 2, v0' % V(u0))
    A('v_add_u32 %s, s84, %s' % (V(u0), V(u0)))
    A('v_cndmask_b32 %s, %s, %s, %s' % (V(vPA), V(vPC), V(u0), sr(sMLO, 2)))
    A('v_bfe_u32 %s, v0, 1, 3' % V(u0))
    A('v_lshlrev_b32 %s, 5, %s' % (V(u0), V(u0)))
    A('v_lshl_add_u32 %s, %s, 2, %s' % (V(u0), V(u1), V(u0)))
    A('s_lshl_b32 s84, s%d, 8' % sRBL)
    A('s_lshr_b32 s85, s%d, 1' % sW)
    A('s_lshl_b32 s85, s85, 4')
    A('s_add_u32 s84, s84, s85')
    A('s_and_b32 s85, s%d, 1' % sW)
    A('s_lshl_b32 s85, s85, 3')
    A('s_add_u32 s84, s84, s85')
    A('v_add_u32 %s, s84, %s' % (V(vPB), V(u0)))
    cp = LOC + 8
    A('v_and_b32 %s, 1, %s' % (V(u0), V(t1)))
    A('v_lshlrev_b32 %s, 5, %s' % (V(u0), V(u0)))
    A('v_lshl_add_u32 %s, %s, 3, %s' % (V(cp), V(t5), V(u0)))
    A('v_lshl_add_u32 %s, %s, 2, %s' % (V(u0), V(t3), V(t4)))
    A('v_mul_u32_u24 %s, 192, %s' % (V(u1), V(u0)))
    A('v_add_u32 %s, %s, %s' % (V(vT1L), V(u1), V(cp)))
    A('v_add_u32 %s, 49152, %s' % (V(vT1H), V(vT1L)))
    A('v_lshl_add_u32 %s, %s, 3, %s' % (V(u1), V(t3), V(t4)))
    A('v_mul_u32_u24 %s, 192, %s' % (V(u1), V(u1)))
    A('v_add_u32 v240, %s, %s' % (V(u1), V(cp)))
    A('v_add_u32 v241, 49152, v240')
    A('s_cmp_eq_u32 s%d, 3' % sW)
    A('s_cselect_b32 s90, 0, s%d' % sW)
    A('s_lshl_b32 s90, s90, 6')
    A('v_add_u32 v242, s90, v240')
    A('v_add_u32 v243, s90, v241')
    A('v_mul_u32_u24 %s, 192, %s' % (V(u1), V(t4)))
    A('v_add_u32 %s, %s, %s' % (V(u1), V(u1), V(cp)))
    A('v_add_u32 %s, %d, %s' % (V(vCR1), CR1, V(u1)))
    A('s_and_b32 s84, s%d, 1' % sW)
    A('s_lshl_b32 s84, s84, 6')
    A('v_add_u32 %s, s84, %s' % (V(u1), V(cp)))
    A('v_lshrrev_b32 %s, 1, %s' % (V(vA), V(t4)))
    A('v_lshlrev_b32 %s, 6, %s' % (V(vA), V(vA)))
    A('v_xor_b32 %s, %s, %s' % (V(u1), V(u1), V(vA)))
    A('v_lshl_add_u32 %s, %s, 7, %s' % (V(vTW0), V(u0), V(u1)))
    A('v_xor_b32 %s, 64, %s' % (V(vTW1), V(vTW0)))
    A('v_lshrrev_b32 %s, 3, v0' % V(u0))
    A('v_and_b32 %s, 1, %s' % (V(u1), V(t1)))
    A('v_lshlrev_b32 %s, 2, %s' % (V(u1), V(u1)))
    A('v_and_b32 %s, 7, v0' % V(vA))
    A('v_xor_b32 %s, %s, %s' % (V(u1), V(u1), V(vA)))
    A('v_lshlrev_b32 %s, 4, %s' % (V(u1), V(u1)))
    A('v_lshl_add_u32 %s, %s, 10, %s' % (V(vWD), V(u0), V(u1)))
    A('v_and_b32 %s, 1, %s' % (V(u0), V(t1)))
    A('v_lshl_add_u32 %s, %s, 2, %s' % (V(u0), V(u0), V(t4)))
    A('v_lshl_add_u32 %s, %s, 4, %s' % (V(u0), V(t3), V(u0)))
    A('v_mul_u32_u24 %s, 224, %s' % (V(u0), V(u0)))
    A('v_lshl_add_u32 %s, %s, 3, %s' % (V(vT3L), V(t5), V(u0)))
    A('v_add_u32 %s, 57344, %s' % (V(vT3H), V(vT3L)))
    A('v_mul_u32_u24 %s, 224, %s' % (V(u0), V(t4)))
    A('v_lshl_add_u32 %s, %s, 3, %s' % (V(u0), V(t5), V(u0)))
    A('v_add_u32 %s, %d, %s' % (V(vCR3), CR3, V(u0)))
    for i in range(7):
        d = vB3D + i
        A('v_add_u32 %s, %d, v0' % (V(u0), 64 * i))
        A('v_mul_u32_u24 %s, 4682, %s' % (V(d), V(u0)))
        A('v_lshrrev_b32 %s, 16, %s' % (V(d), V(d)))
        A('v_mul_u32_u24 %s, 14, %s' % (V(u1), V(d)))
        A('v_sub_u32 %s, %s, %s' % (V(u1), V(u0), V(u1)))
        A('v_mul_u32_u24 %s, 3584, %s' % (V(d), V(d)))
        A('v_lshl_add_u32 %s, %s, 4, %s' % (V(d), V(u1), V(d)))
    A('v_and_b32 %s, 1, %s' % (V(u0), V(t1)))
    A('v_lshlrev_b32 %s, 14, %s' % (V(u0), V(u0)))
    A('v_lshl_add_u32 %s, %s, 8, %s' % (V(u0), V(t3), V(u0)))
    A('v_lshl_add_u32 %s, %s, 4, %s' % (V(vX1S), V(t0), V(u0)))
    A('v_and_b32 %s, 1, %s' % (V(u0), V(t1)))
    A('v_lshlrev_b32 %s, 9, %s' % (V(u0), V(u0)))
    A('v_lshl_add_u32 %s, %s, 4, %s' % (V(u0), V(t0), V(u0)))
    A('v_lshl_add_u32 %s, %s, 10, %s' % (V(vHS), V(t3), V(u0)))
    A('v_lshl_add_u32 %s, %s, 3, %s' % (V(vHS1), V(t3), V(u0)))
    A('v_lshlrev_b32 %s, 7, %s' % (V(u0), V(t2)))
    A('v_lshl_add_u32 %s, %s, 2, %s' % (V(vSTS), V(t3), V(u0)))
    A('v_lshl_add_u32 %s, %s, 6, %s' % (V(vSTL), V(t3), V(u0)))
    A('v_min_u32 %s, 16, %s' % (V(u0), V(t2)))
    A('v_lshlrev_b32 %s, 5, %s' % (V(u0), V(u0)))
    A('v_lshl_add_u32 %s, %s, 4, %s' % (V(vKVL), V(t3), V(u0)))
    A('v_lshlrev_b32 %s, 10, %s' % (V(u0), V(t2)))
    A('v_lshl_add_u32 %s, %s, 3, %s' % (V(vOUT), V(t3), V(u0)))
    for reg, x in ((vSC0, 0), (vSC2, 2), (vSC1, 1)):
        A('s_xor_b32 s84, s%d, %d' % (sW, x))
        A('s_lshl_b32 s84, s84, 13')
        A('s_add_u32 s84, s84, %d' % SCR)
        A('v_add_u32 %s, s84, %s' % (V(reg), V(vL16)))
    A('s_mul_i32 s91, s%d, %d' % (sW, SLAB_ST))
    A('s_add_u32 s91, s91, %d' % SLAB)
    A('v_and_b32 %s, 1, %s' % (V(u0), V(t1)))
    A('v_mul_u32_u24 %s, 1088, %s' % (V(u0), V(u0)))
    A('v_add_u32 %s, s91, %s' % (V(u0), V(u0)))
    A('v_lshl_add_u32 %s, %s, 6, %s' % (V(u1), V(t0), V(u0)))
    A('v_lshl_add_u32 %s, %s, 5, %s' % (V(vSLW), V(t3), V(u1)))
    A('v_bfe_u32 %s, v0, 2, 1' % V(u1))
    A('v_lshl_add_u32 %s, %s, 3, %s' % (V(u1), V(u1), V(t5)))
    A('v_bfe_u32 %s, v0, 3, 1' % V(vA))
    A('v_lshl_add_u32 %s, %s, 2, %s' % (V(u1), V(vA), V(u1)))
    A('v_lshl_add_u32 %s, %s, 2, %s' % (V(u1), V(u1), V(u0)))
    A('v_add_u32 %s, 1024, %s' % (V(vSLZ), V(u1)))
    A('s_lshl_b32 s84, s%d, 7' % sW)
    A('s_add_u32 s84, s84, %d' % RS1)
    A('v_lshlrev_b32 %s, 4, %s' % (V(u0), V(t3)))
    A('v_add_u32 %s, s84, %s' % (V(vRS1R), V(u0)))
    A('v_xor_b32 %s, %s, %s' % (V(u0), V(t3), V(t0)))
    A('v_lshlrev_b32 %s, 4, %s' % (V(u0), V(u0)))
    A('v_lshl_add_u32 %s, %s, 8, %s' % (V(u0), V(t2), V(u0)))
    A('v_add_u32 v228, s87, %s' % V(u0))
    for kk in range(1, 8):
        A('v_xor_b32 v%d, %d, v228' % (228 + kk, kk * 32))
    A('v_xor_b32 %s, %s, v0' % (V(u0), V(t1)))
    A('v_and_b32 %s, 1, %s' % (V(u0), V(u0)))
    A('v_cmp_eq_u32 vcc, 0, %s' % V(u0))
    A('v_mov_b32 %s, 0x3f803f80' % V(u1))
    A('v_cndmask_b32 v160, 0, %s, vcc' % V(u1))
    for i in range(1, 4):
        A('v_mov_b32 v%d, v160' % (160 + i))


def finish_stats(S, Q, mean, rstd):
    V = vr
    A('v_mul_f32 %s, 0x3b000000, %s' % (V(mean), V(S)))
    A('v_mul_f32 %s, 0x3b000000, %s' % (V(rstd), V(Q)))
    A('v_fma_f32 %s, -%s, %s, %s' % (V(rstd), V(mean), V(mean), V(rstd)))
    A('v_max_f32 %s, 0, %s' % (V(rstd), V(rstd)))
    A('v_add_f32 %s, 0x3727c5ac, %s' % (V(rstd), V(rstd)))
    A('v_rsq_f32 %s, %s' % (V(rstd), V(rstd)))


def stats_from_partials(T, mean, rstd):
    V = vr
    seq = []
    for i in range(4):
        seq.append('v_pk_add_f32 %s, %s, %s' % (V(T + 2 * i, 2), V(T + 2 * i, 2), V(T + 8 + 2 * i, 2)))
    for i in range(2):
        seq.append('v_pk_add_f32 %s, %s, %s' % (V(T + 2 * i, 2), V(T + 2 * i, 2), V(T + 4 + 2 * i, 2)))
    seq.append('v_pk_add_f32 %s, %s, %s' % (V(T, 2), V(T, 2), V(T + 2, 2)))
    seq.append('v_mov_b32 %s, %s' % (V(T + 2), V(T)))
    seq.append('v_mov_b32 %s, %s' % (V(T + 3), V(T + 1)))
    seq.append('v_permlane32_swap_b32 %s, %s' % (V(T), V(T + 2)))
    seq.append('v_permlane32_swap_b32 %s, %s' % (V(T + 1), V(T + 3)))
    seq.append('v_pk_add_f32 %s, %s, %s' % (V(T, 2), V(T, 2), V(T + 2, 2)))
    seq.append('v_mul_f32 %s, 0x3b000000, %s' % (V(mean), V(T)))
    seq.append('v_mul_f32 %s, 0x3b000000, %s' % (V(rstd), V(T + 1)))
    seq.append('v_fma_f32 %s, -%s, %s, %s' % (V(rstd), V(mean), V(mean), V(rstd)))
    seq.append('v_max_f32 %s, 0, %s' % (V(rstd), V(rstd)))
    seq.append('v_add_f32 %s, 0x3727c5ac, %s' % (V(rstd), V(rstd)))
    seq.append('v_rsq_f32 %s, %s' % (V(rstd), V(rstd)))
    return seq


def mfrag_seq(mean, t0, t1, outs):
    V = vr
    seq = []
    seq.append('v_cvt_pk_bf16_f32 %s, -%s, -%s' % (V(t0), V(mean), V(mean)))
    seq.append('v_and_b32 %s, 0xffff0000, %s' % (V(t1), V(t0)))
    seq.append('v_add_f32 %s, %s, %s' % (V(t1), V(mean), V(t1)))
    seq.append('v_cvt_pk_bf16_f32 %s, -%s, 0' % (V(t1), V(t1)))
    for f, m in outs:
        seq.append('v_cndmask_b32 %s, 0, %s, %s' % (V(f), V(t0), sr(m, 2)))
        seq.append('v_cndmask_b32 %s, 0, %s, %s' % (V(f + 1), V(t1), sr(m, 2)))
        seq.append('v_mov_b32 %s, 0' % V(f + 2))
        seq.append('v_mov_b32 %s, 0' % V(f + 3))
    return seq


def write_crows(c, addr, stride, t0, t1):
    V = vr
    A('v_cvt_pk_bf16_f32 %s, %s, %s' % (V(t0), V(c), V(c)))
    A('v_and_b32 %s, 0xffff0000, %s' % (V(t1), V(t0)))
    A('v_sub_f32 %s, %s, %s' % (V(t1), V(c), V(t1)))
    A('v_cvt_pk_bf16_f32 %s, %s, 0' % (V(t1), V(t1)))
    A('ds_write_b16 %s, %s' % (V(addr), V(t0)))
    A('ds_write_b16 %s, %s offset:%d' % (V(addr), V(t1), stride))
    A('ds_write_b16 %s, %s offset:%d' % (V(addr), V(t0), 2 * stride))
    A('ds_write_b16_d16_hi %s, %s offset:%d' % (V(addr), V(t1), 3 * stride))


def phi(c, u, rs, lane_mode):
    V = vr
    for i in range(8):
        if lane_mode:
            A('v_pk_fma_f32 %s, %s, %s, %s op_sel_hi:[1,0,1]' % (V(c + 2 * i, 2), V(c + 2 * i, 2), V(rs, 2), sr(sEPS, 2)))
        else:
            A('v_pk_fma_f32 %s, %s, %s, %s' % (V(c + 2 * i, 2), V(c + 2 * i, 2), V(rs + 2 * i, 2), sr(sEPS, 2)))
    for i in range(8):
        A('v_pk_mul_f32 %s, %s, %s' % (V(u + 2 * i, 2), V(c + 2 * i, 2), sr(sL2E, 2)))
    for i in range(16):
        A('v_exp_f32_e64 %s, %s clamp' % (V(u + i), V(u + i)))
        A('v_max_f32 %s, s%d, %s' % (V(c + i), sEPS, V(c + i)))
    for i in range(8):
        A('v_pk_add_f32 %s, %s, %s' % (V(c + 2 * i, 2), V(c + 2 * i, 2), V(u + 2 * i, 2)))


def dma_stage(srd_b, row0_s, nrows, lds_s, lds_off, tag):
    for i in range(nrows // 8):
        A('s_add_u32 m0, %s, %d' % (lds_s, lds_off + i * 1024))
        A('s_add_u32 s85, %s, %d' % (row0_s[0], row0_s[1] + i * 8192))
        A('buffer_load_dwordx4 %s, %s, s85 offen lds' % (vr(vWD), srd(srd_b)), tag)


def w2_rows(ks):
    jj, kap = divmod(ks, 7)
    if kap < 6:
        p, a = divmod(kap, 2)
        r = 112 * jj + 32 * p + 8 * a
        return r, r + 16
    r = 112 * jj + 96
    return r, r + 8


def read_w2(ks_list, row_base, b0, b1, off):
    for ks in ks_list:
        r1, r2 = w2_rows(ks)
        for ct, b in ((0, b0), (1, b1)):
            f = (ks * 2 + ct) * 4
            A('ds_read_b64_tr_b16 %s, %s offset:%d' % (ar(f, 2), vr(b), off + (r1 - row_base) * 128))
            A('ds_read_b64_tr_b16 %s, %s offset:%d' % (ar(f + 2, 2), vr(b), off + (r2 - row_base) * 128))


def stage_bases(s_lds):
    A('v_add_u32 %s, %s, %s' % (vr(vA), s_lds, vr(vTW0)))
    A('v_add_u32 %s, %s, %s' % (vr(vB), s_lds, vr(vTW1)))


def dma_b3(tag):
    A('s_mul_i32 s84, s%d, %d' % (sW, 128 * 3584))
    A('s_mul_i32 s85, s%d, 224' % sJ)
    A('s_add_u32 s84, s84, s85')
    A('s_mul_i32 s86, s%d, 28672' % sW)
    for p in range(4):
        if p:
            A('s_add_u32 s84, s84, %d' % (32 * 3584))
        for i in range(7):
            A('s_add_u32 m0, s86, %d' % (p * 7168 + i * 1024))
            A('s_nop 0')
            A('buffer_load_dwordx4 %s, %s, s84 offen lds' % (vr(vB3D + i), srd(SW1)), tag)


W2A1 = (0, 96, list(range(0, 6)))
W2A2 = (96, 48, [6, 7, 8])
W2B = (144, 64, [9, 10, 11, 12])
W2C1 = (208, 192, list(range(13, 25)))
W2C2 = (400, 48, [25, 26, 27])


def check_split():
    for r0, n, kss in (W2A1, W2A2, W2B, W2C1, W2C2):
        for ks in kss:
            r1, r2 = w2_rows(ks)
            assert r0 <= r1 and r2 + 8 <= r0 + n, (r0, n, ks)


check_split()


def w2_row_s():
    A('s_mul_i32 s92, s%d, %d' % (sW, 448 * 1024))
    A('s_lshl_b32 s85, s%d, 7' % sCG)
    A('s_add_u32 s92, s92, s85')


accQ, accK, accV = 88, 104, 120


def p1_l1():
    V = vr
    G16, S4, C4, SEL, WR, XA = 136, 152, 156, 160, 164, 196
    A('s_lshl_b32 s86, s%d, 2' % sRB)
    A('s_add_u32 s86, s86, s%d' % sW)
    A('s_lshl_b32 s86, s86, 15')
    A('s_lshl_b32 s87, s%d, 14' % sW)
    A('s_add_u32 s87, s87, %d' % XS)
    A('s_lshl_b32 s88, s%d, 6' % sJ)
    A('s_mul_i32 s89, s%d, 3072' % sW)
    dma_x(0, 'X0')
    dma_b1_l1(0, 'B0')
    dma_x(1, 'X1')
    dma_b1_l1(1, 'B1')
    dma_b1_l1(2, 'B2')
    dma_b1_l1(3, 'B3')
    setup_addrs()
    A('s_lshl_b32 s84, s%d, 15' % sTTO)
    A('s_lshl_b32 s85, s%d, 7' % sCG)
    A('s_add_u32 s84, s84, s85')
    A('s_and_b32 s85, s%d, 1' % sW)
    A('s_lshl_b32 s85, s85, 6')
    A('s_add_u32 s93, s84, s85')
    for J in range(4):
        A('buffer_load_dwordx2 %s, %s, %s, s93 offen offset:%d' % (V(48 + 2 * J, 2), V(vOUT), srd(SX), J * 16), 'RES')

    def wreads(ks):
        slot = (ks & 1) * 16
        lo = ks < 16
        off = (ks if lo else ks - 16) * 3072
        b, bc = (240, 242) if lo else (241, 243)
        for t in range(3):
            A('ds_read_b64_tr_b16 %s, v%d offset:%d' % (V(WR + slot + 4 * t, 2), b, off + t * 64), ('W', ks))
            A('ds_read_b64_tr_b16 %s, v%d offset:%d' % (V(WR + slot + 4 * t + 2, 2), b, off + t * 64 + 768), ('W', ks, t))
        A('ds_read_b64_tr_b16 %s, v%d offset:%d' % (V(WR + slot + 12, 2), bc, off), ('W', ks))
        A('ds_read_b64_tr_b16 %s, v%d offset:%d' % (V(WR + slot + 14, 2), bc, off + 768), ('W', ks, 3))

    for q in range(4):
        A.wait(vm=['X%d' % q, 'B%d' % q])
        barrier()
        if q == 0:
            stamp('q0 landed')
            Ln = A.newlabel()
            A('s_cmp_ge_u32 s2, 64')
            A('s_cbranch_scc1 %s' % Ln)
            A('s_cmp_lg_u32 s%d, 0' % sW)
            A('s_cbranch_scc1 %s' % Ln)
            A('s_lshl_b32 s84, s2, 2')
            A('v_mov_b32 %s, 1' % V(vA))
            A('s_mov_b64 exec, 1')
            A.raw('buffer_store_dword %s, off, %s, s84 sc1' % (V(vA), srd(SDBG)))
            A('s_mov_b64 exec, -1')
            A.label(Ln)
        for kk in range(8):
            A('ds_read_b128 %s, v%d offset:%d' % (V(XA + 4 * kk, 4), 228 + kk, (q & 1) * 8192), 'XA')
        A.wait(lg='XA')
        wreads(q * 8)
        if q < 2:
            dma_x(q + 2, 'X%d' % (q + 2))
        if q == 3:
            A('v_lshlrev_b32 %s, 2, v0' % V(244))
            A('buffer_load_dword %s, %s, %s, 0 offen sc1' % (V(245), V(244), srd(SDBG)), 'DBG')
        for kk in range(8):
            ks = q * 8 + kk
            slot = (ks & 1) * 16
            X = V(XA + 4 * kk, 4)
            first = ks == 0
            mfma32(V(G16, 16), X, X, '0' if first else V(G16, 16))
            mfma16(V(S4, 4), V(SEL, 4), X, '0' if first else V(S4, 4))
            A.wait(lg=('W', ks, 3))
            if kk < 7:
                wreads(ks + 1)
            mfma32(V(accQ, 16), V(WR + slot, 4), X, '0' if first else V(accQ, 16))
            mfma32(V(accK, 16), X, V(WR + slot + 4, 4), '0' if first else V(accK, 16))
            mfma32(V(accV, 16), X, V(WR + slot + 8, 4), '0' if first else V(accV, 16))
            mfma16(V(C4, 4), V(SEL, 4), V(WR + slot + 12, 4), '0' if first else V(C4, 4))
    stamp('p1 loop done')
    A.wait(vm='all')
    Lok, Lp = A.newlabel(), A.newlabel()
    A('v_cmp_eq_u32 vcc, 0, v245')
    A('s_cbranch_vccz %s' % Lok)
    A('s_mov_b32 s%d, 0' % sCNT)
    A.label(Lp)
    A.raw('buffer_load_dword v245, v244, %s, 0 offen sc1' % srd(SDBG))
    A('s_add_u32 s%d, s%d, 1' % (sCNT, sCNT))
    A('s_cmp_gt_u32 s%d, %d' % (sCNT, LIMIT))
    A('s_cbranch_scc1 Lend')
    A.raw('s_waitcnt vmcnt(0)')
    A('v_cmp_eq_u32 vcc, 0, v245')
    A('s_cbranch_vccnz %s' % Lp)
    A.label(Lok)
    Ln = A.newlabel()
    A('s_getreg_b32 s49, hwreg(HW_REG_XCC_ID)')
    A('s_and_b32 s49, s49, 15')
    A('s_cmp_lg_u32 s%d, 0' % sW)
    A('s_cbranch_scc1 %s' % Ln)
    A('s_lshl_b32 s84, s%d, 7' % sXCD)
    A('s_lshl_b32 s85, s%d, 2' % sU)
    A('s_add_u32 s84, s84, s85')
    A('s_add_u32 s84, s84, %d' % XT)
    A('v_mov_b32 %s, s49' % V(vA))
    A('s_mov_b64 exec, 1')
    A.raw('buffer_store_dword %s, off, %s, s84 sc1' % (V(vA), srd(SWS)))
    A('s_mov_b64 exec, -1')
    A.label(Ln)
    for i in range(8):
        A('v_lshlrev_b32 %s, 16, %s' % (V(vRES + 2 * i), V(48 + i)))
        A('v_and_b32 %s, 0xffff0000, %s' % (V(vRES + 2 * i + 1), V(48 + i)))
    barrier()
    A('s_lshl_b32 s84, s%d, 17' % sW)
    A('s_lshl_b32 s85, s%d, 7' % sCG)
    A('s_add_u32 s84, s84, s85')
    A('s_mul_i32 s86, s%d, 28672' % sW)
    A('s_lshl_b32 s87, s%d, 13' % sW)
    A('s_add_u32 s87, s87, %d' % SCR)
    dma_stage(SWO, ('s84', 0), 128, 's86', 0, 'STG')
    w2_row_s()
    dma_stage(SW2, ('s92', W2A1[0] * 1024), W2A1[1], 's86', 16384, 'STG')
    dma_stage(SW2, ('s92', W2A2[0] * 1024), W2A2[1], 's87', 0, 'STG')
    t = 164
    A('v_cndmask_b32 %s, %s, %s, %s' % (V(t), V(C4), V(C4 + 1), sr(sB4, 2)))
    A('v_and_b32 %s, 31, v0' % V(t + 1))
    A('s_add_u32 s84, s90, %d' % CR1)
    A('v_lshl_add_u32 %s, %s, 1, s84' % (V(t + 1), V(t + 1)))
    write_crows(t, t + 1, 192, t + 2, t + 3)
    A('v_and_b32 %s, 31, v0' % V(t + 4))
    A('v_lshl_add_u32 %s, %s, 6, s91' % (V(t + 5), V(t + 4)))
    A('s_mov_b32 exec_lo, 0x0f0f0f0f')
    A('s_mov_b32 exec_hi, 0xf0f0f0f0')
    for i in range(4):
        A('ds_write_b128 %s, %s offset:%d' % (V(t + 5), V(G16 + 4 * i, 4), 16 * i))
    A('s_mov_b64 exec, -1')
    A('v_lshrrev_b32 %s, 3, %s' % (V(t + 6), V(t + 4)))
    A('v_lshl_add_u32 %s, %s, 4, %s' % (V(t + 5), V(t + 6), V(t + 5)))
    A('v_and_b32 %s, 3, v0' % V(t + 6))
    A('v_lshl_add_u32 %s, %s, 2, %s' % (V(t + 5), V(t + 6), V(t + 5)))
    A('ds_read_b32 %s, %s' % (V(t + 7), V(t + 5)), 'GD')
    A('v_cndmask_b32 %s, %s, %s, %s' % (V(t + 6), V(S4), V(S4 + 1), sr(sB4, 2)))
    A.wait(lg='GD')
    finish_stats(t + 6, t + 7, MEAN1, RSTD1)
    for s in mfrag_seq(MEAN1, t, t + 1, [(MF1, sMLO)]):
        A(s)


MEAN1, RSTD1, MF1 = 246, 248, 252


def p1_l2(layer):
    V = vr
    WR, XR, STT = 136, 168, 196 + 36
    NX = 14
    STT = XR + 4 * NX
    barrier()

    seqno = [0]

    def wread(n):
        ks, t = divmod(n, 3)
        slot = (n % 8) * 4
        lo = ks < 16
        off = (ks if lo else ks - 16) * 3072 + t * 64
        b = vT1L if lo else vT1H
        A('ds_read_b64_tr_b16 %s, %s offset:%d' % (V(WR + slot, 2), V(b), off))
        A('ds_read_b64_tr_b16 %s, %s offset:%d' % (V(WR + slot + 2, 2), V(b), off + 1536), ('W', n))

    LOOK = 6
    for n in range(LOOK):
        wread(n)
    A('s_lshl_b32 s84, s%d, 2' % sRB)
    A('s_add_u32 s84, s84, s%d' % sW)
    A('s_lshl_b32 s86, s84, 15')
    A('s_add_u32 s86, s86, %d' % XF)
    A('s_lshl_b32 s87, s84, 12')
    A('s_add_u32 s87, s87, %d' % ST2)
    poll(vPB, 4)
    stamp('p1b poll ok')

    def xload(ks):
        if ks % 4 == 0 and ks:
            A('s_add_u32 s86, s86, 4096')
        A('buffer_load_dwordx4 %s, %s, %s, s86 offen offset:%d sc1' % (V(XR + 4 * (ks % NX), 4), V(vL16), srd(SWS), (ks % 4) * 1024), ('X', ks))

    for ks in range(4):
        xload(ks)
    for i in range(4):
        A('buffer_load_dwordx4 %s, %s, %s, s87 offen offset:%d sc1' % (V(STT + 4 * i, 4), V(vSTL), srd(SWS), 16 * i), 'ST')
    for ks in range(4, NX):
        xload(ks)
    side = []
    for ks in range(32):
        X = V(XR + 4 * (ks % NX), 4)
        A.wait(vm=('X', ks))
        if ks == 5:
            side = stats_from_partials(STT, MEAN1, RSTD1) + mfrag_seq(MEAN1, STT + 4, STT + 5, [(MF1, sMLO)])
        for t in range(3):
            n = ks * 3 + t
            A.wait(lg=('W', n))
            W = V(WR + (n % 8) * 4, 4)
            acc = (accQ, accK, accV)[t]
            c = '0' if ks == 0 else V(acc, 16)
            if t == 0:
                mfma32(V(acc, 16), W, X, c)
            else:
                mfma32(V(acc, 16), X, W, c)
            if n + LOOK < 96:
                wread(n + LOOK)
            for _ in range(2):
                if side:
                    A(side.pop(0))
        if ks + NX < 32:
            xload(ks + NX)
    assert not side
    stamp('p1b loop done')
    barrier()
    dma_b3('B3')


def p1_tail(layer):
    V = vr
    CF, RSR, U, PKF, VF, KVD, Z = 136, 148, 164, 180, 188, 196, 212
    A('v_and_b32 %s, 31, v0' % V(vA))
    A('s_lshl_b32 s84, s%d, 7' % sW)
    A('s_add_u32 s84, s84, %d' % RS1)
    A('v_lshl_add_u32 %s, %s, 2, s84' % (V(vA), V(vA)))
    A('ds_write_b32 %s, %s' % (V(vA), V(RSTD1)))
    if layer == 0:
        for t in range(3):
            A('v_mov_b32 %s, 0' % V(CF + 4 * t + 2))
            A('v_mov_b32 %s, 0' % V(CF + 4 * t + 3))
        A.wait(lg='all')
        barrier()
    for t in range(3):
        A('ds_read_b64_tr_b16 %s, %s offset:%d' % (V(CF + 4 * t, 2), V(vCR1), t * 64), 'CF')
    for J in range(4):
        A('ds_read_b128 %s, %s offset:%d' % (V(RSR + 4 * J, 4), V(vRS1R), J * 32), 'RS')
    A.wait(lg='CF')
    M = V(MF1, 4)
    mfma32(V(accK, 16), M, V(CF + 4, 4), V(accK, 16))
    mfma32(V(accV, 16), M, V(CF + 8, 4), V(accV, 16))
    mfma32(V(accQ, 16), V(CF, 4), M, V(accQ, 16))
    A.wait(lg='RS')
    phi(accK, U, RSR, False)
    for i in range(8):
        A('v_cvt_pk_bf16_f32 %s, %s, %s' % (V(PKF + i), V(accK + 2 * i), V(accK + 2 * i + 1)))
    for i in range(8):
        A('v_pk_mul_f32 %s, %s, %s' % (V(accV + 2 * i, 2), V(accV + 2 * i, 2), V(RSR + 2 * i, 2)))
    for i in range(8):
        A('v_cvt_pk_bf16_f32 %s, %s, %s' % (V(VF + i), V(accV + 2 * i), V(accV + 2 * i + 1)))
    mfma32(V(KVD, 16), V(PKF, 4), V(VF, 4), '0')
    mfma32(V(KVD, 16), V(PKF + 4, 4), V(VF + 4, 4), V(KVD, 16))
    for i in range(4):
        A('v_pk_add_f32 %s, %s, %s' % (V(accK + 2 * i, 2), V(accK + 2 * i, 2), V(accK + 8 + 2 * i, 2)))
    for i in range(2):
        A('v_pk_add_f32 %s, %s, %s' % (V(accK + 2 * i, 2), V(accK + 2 * i, 2), V(accK + 4 + 2 * i, 2)))
    A('v_pk_add_f32 %s, %s, %s' % (V(accK, 2), V(accK, 2), V(accK + 2, 2)))
    A('v_add_f32 %s, %s, %s' % (V(Z), V(accK), V(accK + 1)))
    A('v_mov_b32 %s, %s' % (V(Z + 1), V(Z)))
    A('v_permlane32_swap_b32 %s, %s' % (V(Z), V(Z + 1)))
    A('v_add_f32 %s, %s, %s' % (V(Z), V(Z), V(Z + 1)))
    A('ds_write_b32 %s, %s' % (V(vSLZ), V(Z)))
    for i in range(8):
        A('v_cndmask_b32 %s, %s, %s, %s' % (V(KVD + i), V(KVD + i), V(KVD + 8 + i), sr(sB4, 2)))
    A('ds_write_b128 %s, %s' % (V(vSLW), V(KVD, 4)))
    A('ds_write_b128 %s, %s offset:16' % (V(vSLW), V(KVD + 4, 4)))
    A('s_mul_i32 s84, s%d, 544' % sW)
    A('s_add_u32 s84, s84, %d' % SLAB)
    A('v_add_u32 %s, s84, %s' % (V(vA), V(vL16)))
    A('s_lshl_b32 s84, s%d, 1' % sJ)
    A('s_lshr_b32 s85, s%d, 1' % sW)
    A('s_add_u32 s84, s84, s85')
    A('s_lshl_b32 s84, s84, 4')
    A('s_add_u32 s84, s84, s%d' % sRB)
    A('s_mul_i32 s84, s84, %d' % KVP_RS)
    A('s_and_b32 s85, s%d, 1' % sW)
    A('s_mul_i32 s85, s85, 544')
    A('s_add_u32 s84, s84, s85')
    A('s_add_u32 s84, s84, %d' % (KVP + layer * 32 * 16 * KVP_RS))
    A.wait(lg='all')
    barrier()
    SU = 216
    for i in range(4):
        A('ds_read_b128 %s, %s offset:%d' % (V(SU + 4 * i, 4), V(vA), i * SLAB_ST))
    A.wait(lg='all')
    for i in range(2):
        A('v_pk_add_f32 %s, %s, %s' % (V(SU + 2 * i, 2), V(SU + 2 * i, 2), V(SU + 4 + 2 * i, 2)))
        A('v_pk_add_f32 %s, %s, %s' % (V(SU + 8 + 2 * i, 2), V(SU + 8 + 2 * i, 2), V(SU + 12 + 2 * i, 2)))
    for i in range(2):
        A('v_pk_add_f32 %s, %s, %s' % (V(SU + 2 * i, 2), V(SU + 2 * i, 2), V(SU + 8 + 2 * i, 2)))
    for i in range(4):
        A('v_min_u32 %s, -2, %s' % (V(SU + i), V(SU + i)))
    A('s_mov_b32 exec_hi, 3')
    A('buffer_store_dwordx4 %s, %s, %s, s84 offen sc1' % (V(SU, 4), V(vL16), srd(SWS)))
    A('s_mov_b64 exec, -1')
    stamp('kv partial stored')
    if layer == 0:
        A('v_and_b32 %s, 31, v0' % V(244))
        A('v_lshlrev_b32 %s, 2, %s' % (V(244), V(244)))
        A('s_lshl_b32 s88, s%d, 7' % sXCD)
        A('s_add_u32 s88, s88, %d' % XT)
    phi(accQ, U, RSTD1, True)
    for i in range(8):
        A('v_cvt_pk_bf16_f32 %s, %s, %s' % (V(PKF + i), V(accQ + 2 * i), V(accQ + 2 * i + 1)))
    A('s_lshl_b32 s84, s%d, 2' % sRB)
    A('s_add_u32 s84, s84, s%d' % sW)
    A('s_lshl_b32 s84, s84, 4')
    A('s_add_u32 s84, s84, s%d' % sJ)
    A('s_lshl_b32 s84, s84, 11')
    A('s_add_u32 s84, s84, %d' % (PQ + layer * LSEP))
    A('buffer_store_dwordx4 %s, %s, %s, s84 offen' % (V(PKF, 4), V(vL16), srd(SWS)))
    A('buffer_store_dwordx4 %s, %s, %s, s84 offen offset:1024' % (V(PKF + 4, 4), V(vL16), srd(SWS)))
    if layer == 0:
        A('s_mov_b32 s%d, 0' % sCNT)
        Lp = A.label()
        A('buffer_load_dword v245, v244, %s, s88 offen sc1' % srd(SWS))
        A('s_add_u32 s%d, s%d, 1' % (sCNT, sCNT))
        A('s_cmp_gt_u32 s%d, %d' % (sCNT, LIMIT))
        A('s_cbranch_scc1 Lend')
        A.wait(vm='all')
        A('v_cmp_eq_u32 vcc, -1, v245')
        A('s_cbranch_vccnz %s' % Lp)
        A('v_cmp_ne_u32 vcc, s49, v245')
        Lf = A.newlabel()
        A('s_cbranch_vccz %s' % Lf)
        A('s_mov_b32 s%d, 1' % sSLOW)
        A.label(Lf)
    publish(sMYFL, 4 * layer + 1)
    stamp('pq published')


def reducer(layer):
    V = vr
    R = 88
    A('s_mul_i32 s84, s%d, %d' % (sU, 16 * KVP_RS))
    A('s_mul_i32 s85, s%d, 272' % sW)
    A('s_add_u32 s84, s84, s85')
    A('s_add_u32 s84, s84, %d' % (KVP + layer * 32 * 16 * KVP_RS))
    for i in range(1, 6):
        A('s_add_u32 s%d, s84, %d' % (64 + i, i * 3 * KVP_RS))
    A('s_mov_b32 s64, s84')
    A('v_lshlrev_b32 %s, 3, v0' % V(vB))
    A('s_mov_b32 s%d, 0' % sCNT)
    A('s_mov_b32 exec_hi, 3')
    Lp = A.label()
    for i in range(16):
        A('buffer_load_dwordx2 %s, %s, %s, s%d offen offset:%d sc1' % (V(R + 2 * i, 2), V(vB), srd(SWS), 64 + i // 3, (i % 3) * KVP_RS))
    A('s_add_u32 s%d, s%d, 1' % (sCNT, sCNT))
    A('s_cmp_gt_u32 s%d, %d' % (sCNT, LIMIT))
    A('s_cbranch_scc1 Lend')
    A.wait(vm='all')
    A('v_max_u32 %s, %s, %s' % (V(vA), V(R), V(R + 1)))
    for i in range(1, 16):
        A('v_max3_u32 %s, %s, %s, %s' % (V(vA), V(R + 2 * i), V(R + 2 * i + 1), V(vA)))
    A('v_cmp_eq_u32 vcc, -1, %s' % V(vA))
    A('s_cbranch_vccnz %s' % Lp)
    n = 16
    while n > 1:
        n //= 2
        for i in range(n):
            A('v_pk_add_f32 %s, %s, %s' % (V(R + 2 * i, 2), V(R + 2 * i, 2), V(R + 2 * (i + n), 2)))
    A('v_cvt_pk_bf16_f32 %s, %s, %s' % (V(R), V(R), V(R + 1)))
    A('s_lshl_b32 s84, s%d, 5' % sXCD)
    A('s_add_u32 s84, s84, s%d' % sU)
    A('s_lshl_b32 s84, s84, 10')
    A('s_mul_i32 s85, s%d, 136' % sW)
    A('s_add_u32 s84, s84, s85')
    A('s_add_u32 s84, s84, %d' % (KVF + layer * LSEP))
    A('v_lshlrev_b32 %s, 2, v0' % V(vB))
    A('buffer_store_dword %s, %s, %s, s84 offen' % (V(R), V(vB), srd(SWS)))
    A('s_mov_b64 exec, -1')
    publish(sMYKFL, 4 * layer + 1)
    stamp('kvf published')


def ksplit_tail(acc0, inc):
    V = vr
    A.wait(lg='INC')
    for i in range(8):
        A('v_pk_add_f32 %s, %s, %s' % (V(acc0 + 16 + 2 * i, 2), V(acc0 + 16 + 2 * i, 2), V(inc + 16 + 2 * i, 2)))
    for i in range(4):
        A('ds_write_b128 %s, %s offset:%d' % (V(vSC0), V(acc0 + 16 + 4 * i, 4), i * 1024))
    for i in range(8):
        A('v_pk_add_f32 %s, %s, %s' % (V(acc0 + 2 * i, 2), V(acc0 + 2 * i, 2), V(inc + 2 * i, 2)))
    A.wait(lg='all')
    barrier()
    for i in range(4):
        A('ds_read_b128 %s, %s offset:%d' % (V(inc + 4 * i, 4), V(vSC1), i * 1024), ('I2', i))
    for i in range(4):
        A.wait(lg=('I2', i))
        for k in range(2):
            A('v_pk_add_f32 %s, %s, %s' % (V(acc0 + 4 * i + 2 * k, 2), V(acc0 + 4 * i + 2 * k, 2), V(inc + 4 * i + 2 * k, 2)))


def pack_and_stats(P, stbase):
    V = vr
    for i in range(8):
        A('v_cvt_pk_bf16_f32 %s, %s, %s' % (V(P + i), V(vRES + 2 * i), V(vRES + 2 * i + 1)))


def stats_store(P, T, stbase):
    V = vr
    A('v_mov_b32 %s, 0x3f803f80' % V(T + 4))
    for k in range(4):
        A('v_mov_b32 %s, 0' % V(T + k))
    for i in range(8):
        A('v_dot2c_f32_bf16 %s, %s, %s' % (V(T + (i & 1)), V(P + i), V(T + 4)))
        A('v_dot2c_f32_bf16 %s, %s, %s' % (V(T + 2 + (i & 1)), V(P + i), V(P + i)))
    A('v_add_f32 %s, %s, %s' % (V(T), V(T), V(T + 1)))
    A('v_add_f32 %s, %s, %s' % (V(T + 2), V(T + 2), V(T + 3)))
    A('v_permlane32_swap_b32 %s, %s' % (V(T), V(T + 2)))
    A('v_add_f32 %s, %s, %s' % (V(T), V(T), V(T + 2)))
    A('s_lshl_b32 s84, s%d, 12' % sTTO)
    A('s_lshl_b32 s85, s%d, 4' % sCG)
    A('s_add_u32 s84, s84, s85')
    A('s_and_b32 s85, s%d, 1' % sW)
    A('s_lshl_b32 s85, s85, 3')
    A('s_add_u32 s84, s84, s85')
    A('s_add_u32 s84, s84, %d' % stbase)
    A('buffer_store_dword %s, %s, %s, s84 offen' % (V(T), V(vSTS), srd(SWS)))


def p2(layer):
    V = vr
    PQ1, PQ0, KF, ACC1, ND, O = 88, 120, 152, 184, 216, 248
    ACC0 = PQ1
    if layer == 0:
        A('s_mul_i32 s86, s%d, 28672' % sW)
        stage_bases('s86')
        for hh in range(8):
            for ct, b in ((0, vA), (1, vB)):
                A('ds_read_b64_tr_b16 %s, %s offset:%d' % (wo_frag_half(hh, ct, 0), V(b), hh * 2048))
                A('ds_read_b64_tr_b16 %s, %s offset:%d' % (wo_frag_half(hh, ct, 1), V(b), hh * 2048 + 1024))
        read_w2(W2A1[2], W2A1[0], vA, vB, 16384)
        A('s_lshl_b32 s87, s%d, 13' % sW)
        A('s_add_u32 s87, s87, %d' % SCR)
        A.wait(lg='all')
        stage_bases('s87')
        read_w2(W2A2[2], W2A2[0], vA, vB, 0)
        A.wait(lg='all')
        barrier()
    A('s_lshl_b32 s86, s%d, 5' % sXCD)
    A('s_lshl_b32 s85, s%d, 3' % sW)
    A('s_add_u32 s86, s86, s85')
    A('s_lshl_b32 s86, s86, 10')
    A('s_add_u32 s86, s86, %d' % (KVF + layer * LSEP))
    A('s_add_u32 s87, s86, 4096')
    A('s_lshl_b32 s88, s%d, 15' % sTTO)
    A('s_lshl_b32 s85, s%d, 13' % sW)
    A('s_add_u32 s88, s88, s85')
    A('s_add_u32 s88, s88, %d' % (PQ + layer * LSEP))
    A('s_xor_b32 s64, s88, 0x8000')
    A('s_add_u32 s65, s64, 4096')
    A('s_add_u32 s89, s88, 4096')
    poll(vPA, 4 * layer + 1)
    stamp('p2 poll ok')
    for hh in range(8):
        A('buffer_load_dwordx4 %s, %s, %s, s%d offen offset:%d sc1' % (V(KF + 4 * hh, 4), V(vKVL), srd(SWS), 86 + hh // 4, (hh % 4) * 1024))
        A('buffer_load_dwordx4 %s, %s, %s, s%d offen offset:%d sc1' % (V(PQ1 + 4 * hh, 4), V(vL16), srd(SWS), 64 + hh // 4, (hh % 4) * 1024), ('P', hh))
    for hh in range(8):
        A('buffer_load_dwordx4 %s, %s, %s, s%d offen offset:%d sc1' % (V(PQ0 + 4 * hh, 4), V(vL16), srd(SWS), 88 + hh // 4, (hh % 4) * 1024), ('P', 8 + hh))
    if layer == 0:
        dma_b3('B3')

    def nd(i):
        A.wait(vm=('P', i))
        pq = (PQ1 if i < 8 else PQ0) + 4 * (i & 7)
        mfma32(V(ND + 16 * (i & 1), 16), V(KF + 4 * (i & 7), 4), V(pq, 4), '0')

    def valu(i):
        n = ND + 16 * (i & 1)
        o = O + 4 * (i & 1)
        s = ['v_add_f32 %s, s%d, %s' % (V(vA), sEPS, V(n + 8)),
             'v_rcp_f32 %s, %s' % (V(vA), V(vA))]
        for k in range(4):
            s.append('v_mul_f32 %s, %s, %s' % (V(n + 2 * k), V(n + 2 * k), V(vA)))
            s.append('v_mul_f32 %s, %s, %s' % (V(n + 2 * k + 1), V(n + 2 * k + 1), V(vA)))
        for k in range(4):
            s.append('v_cvt_pk_bf16_f32 %s, %s, %s' % (V(o + k), V(n + 2 * k), V(n + 2 * k + 1)))
        return s

    def gemm(i, ct):
        acc = (ACC1 if i < 8 else ACC0) + 16 * ct
        mfma32(V(acc, 16), wo_frag(i & 7, ct), V(O + 4 * (i & 1), 4), '0' if (i & 7) == 0 else V(acc, 16))

    nd(0)
    for i in range(17):
        s = valu(i) if i < 16 else []
        extra = []
        if 10 <= i <= 13:
            k = (i - 10) * 2
            extra = ['ds_write_b128 %s, %s offset:%d' % (V(vSC2), V(ACC1 + 4 * (k + z), 4), (k + z) * 1024) for z in range(2)]
        if i + 1 < 16:
            nd(i + 1)
        for x in s[:5]:
            A(x)
        if i >= 1:
            gemm(i - 1, 1)
        for x in s[5:10] + extra[:1]:
            A(x)
        if i >= 1:
            gemm(i - 1, 0)
        for x in s[10:] + extra[1:]:
            A(x)
        if i == 14:
            A.wait(lg='all')
            barrier()
            for k in range(8):
                A('ds_read_b128 %s, %s offset:%d' % (V(ACC1 + 4 * k, 4), V(vSC0), k * 1024), 'INC')
    stamp('p2 loop done')
    ksplit_tail(ACC0, ACC1)
    for i in range(8):
        A('v_pk_add_f32 %s, %s, %s' % (V(vRES + 2 * i, 2), V(vRES + 2 * i, 2), V(ACC0 + 2 * i, 2)))
    P = 120
    pack_and_stats(P, 0)
    A('s_lshl_b32 s84, s%d, 15' % sTTO)
    A('s_lshl_b32 s85, s%d, 11' % sCG)
    A('s_add_u32 s84, s84, s85')
    A('s_and_b32 s85, s%d, 1' % sW)
    A('s_lshl_b32 s85, s85, 10')
    A('s_add_u32 s84, s84, s85')
    A('s_add_u32 s84, s84, %d' % (X1F + layer * LSEP))
    A('buffer_store_dwordx4 %s, %s, %s, s84 offen' % (V(P, 4), V(vX1S), srd(SWS)))
    A('buffer_store_dwordx4 %s, %s, %s, s84 offen offset:512' % (V(P + 4, 4), V(vX1S), srd(SWS)))
    stats_store(P, 128, ST1 + layer * LSEP)
    publish(sMYFL, 4 * layer + 2)
    stamp('x1 published')


def p3(layer):
    V = vr
    ACC, XR, STT, WR, MF = 88, 144, 192, 208, 240
    MEAN, RSTD = 248, 250
    NX = 6
    barrier()
    if layer == 0:
        ones, C = 144, 148
        for i in range(4):
            A('v_mov_b32 %s, 0x3f803f80' % V(ones + i))
        A('s_lshl_b32 s84, s%d, 5' % sW)
        A('s_add_u32 s85, s%d, 4' % sW)
        A('s_min_u32 s85, s85, 6')
        A('s_lshl_b32 s85, s85, 5')
        bases = 156
        A('v_add_u32 %s, s84, %s' % (V(bases), V(vT3L)))
        A('v_add_u32 %s, s84, %s' % (V(bases + 1), V(vT3H)))
        A('v_add_u32 %s, s85, %s' % (V(bases + 2), V(vT3L)))
        A('v_add_u32 %s, s85, %s' % (V(bases + 3), V(vT3H)))
        F = 160

        def rd(n):
            t, Q = divmod(n, 16)
            b = bases + 2 * t + (Q >= 8)
            off = (Q % 8) * 7168
            A('ds_read_b64_tr_b16 %s, %s offset:%d' % (V(F + 4 * (n % 8), 2), V(b), off))
            A('ds_read_b64_tr_b16 %s, %s offset:%d' % (V(F + 4 * (n % 8) + 2, 2), V(b), off + 1792), ('C', n))
        for n in range(7):
            rd(n)
        for n in range(32):
            A.wait(lg=('C', n))
            c = C + 4 * (n // 16)
            mfma16(V(c, 4), V(ones, 4), V(F + 4 * (n % 8), 4), '0' if n % 16 == 0 else V(c, 4))
            if n + 7 < 32:
                rd(n + 7)
        A('v_and_b32 %s, 15, v0' % V(vA))
        A('v_lshlrev_b32 %s, 1, %s' % (V(vA), V(vA)))
        A('s_add_u32 s84, s84, %d' % CR3)
        A('s_add_u32 s85, s85, %d' % CR3)
        A('v_add_u32 %s, s85, %s' % (V(vB), V(vA)))
        A('v_add_u32 %s, s84, %s' % (V(vA), V(vA)))
        write_crows(C, vA, 224, 192, 193)
        write_crows(C + 4, vB, 224, 194, 195)
        A.wait(lg='all')
        barrier()

    def wread(n):
        Q, nt = divmod(n, 7)
        slot = WR + (n % 8) * 4
        if Q < 16:
            b = vT3L if Q < 8 else vT3H
            off = (Q % 8) * 7168 + nt * 32
            A('ds_read_b64_tr_b16 %s, %s offset:%d' % (V(slot, 2), V(b), off))
            A('ds_read_b64_tr_b16 %s, %s offset:%d' % (V(slot + 2, 2), V(b), off + 1792), ('W', n))
        else:
            A('ds_read_b64_tr_b16 %s, %s offset:%d' % (V(slot, 2), V(vCR3), nt * 32), ('W', n))

    LOOK = 6
    for n in range(LOOK):
        wread(n)
    A('s_lshl_b32 s84, s%d, 2' % sRB)
    A('s_add_u32 s84, s84, s%d' % sW)
    A('s_lshl_b32 s86, s84, 15')
    A('s_add_u32 s86, s86, %d' % (X1F + layer * LSEP))
    A('s_add_u32 s87, s86, 16384')
    A('s_lshl_b32 s88, s84, 12')
    A('s_add_u32 s88, s88, %d' % (ST1 + layer * LSEP))
    A('s_mul_i32 s89, s84, 112')
    A('s_mul_i32 s85, s%d, 7' % sJ)
    A('s_add_u32 s89, s89, s85')
    A('s_lshl_b32 s89, s89, 10')
    A('s_add_u32 s89, s89, %d' % (HF + layer * LSEP))
    A('s_add_u32 s64, s89, 4096')
    poll(vPB, 4 * layer + 2)
    stamp('p3 poll ok')

    def xload(Q):
        if Q % 4 == 0 and Q:
            A('s_add_u32 s86, s86, 4096')
            A('s_add_u32 s87, s87, 4096')
        for u in range(2):
            A('buffer_load_dwordx4 %s, %s, %s, s%d offen offset:%d sc1' % (V(XR + 8 * (Q % NX) + 4 * u, 4), V(vL16), srd(SWS), 86 + u, (Q % 4) * 1024), ('X', Q))

    for Q in range(2):
        xload(Q)
    for i in range(4):
        A('buffer_load_dwordx4 %s, %s, %s, s88 offen offset:%d sc1' % (V(STT + 4 * i, 4), V(vSTL), srd(SWS), 16 * i), 'ST')
    for Q in range(2, NX):
        xload(Q)
    side = []
    for Q in range(17):
        if Q < 16:
            A.wait(vm=('X', Q))
        if Q == 3:
            side = stats_from_partials(STT, MEAN, RSTD) + mfrag_seq(MEAN, STT + 4, STT + 5, [(MF, sM0), (MF + 4, sM1)])
            side += ['v_and_b32 %s, 31, v0' % V(STT + 6),
                     's_lshl_b32 s84, s%d, 7' % sW,
                     's_add_u32 s84, s84, %d' % RS3,
                     'v_lshl_add_u32 %s, %s, 2, s84' % (V(STT + 6), V(STT + 6)),
                     'ds_write_b32 %s, %s' % (V(STT + 6), V(RSTD))]
        for nt in range(7):
            n = Q * 7 + nt
            A.wait(lg=('W', n))
            W = V(WR + (n % 8) * 4, 4)
            for u in range(2):
                acc = ACC + 8 * nt + 4 * u
                X = V(XR + 8 * (Q % NX) + 4 * u, 4) if Q < 16 else V(MF + 4 * u, 4)
                mfma16(V(acc, 4), W, X, '0' if Q == 0 else V(acc, 4))
                if u == 0 and n + LOOK < 17 * 7:
                    wread(n + LOOK)
                if u == 1 and side:
                    A(side.pop(0))
        if Q + NX < 16:
            xload(Q + NX)
        if Q == 10 and layer == 0:
            A('s_lshl_b32 s87, s%d, 13' % sW)
            A('s_add_u32 s87, s87, %d' % SCR)
            dma_stage(SW2, ('s92', W2B[0] * 1024), W2B[1], 's87', 0, 'STG')
    assert not side
    stamp('p3 loop done')
    T = XR
    k = 0
    for p in range(3):
        for u in range(2):
            t = T + 4 * k
            k += 1
            a0, a1 = ACC + 16 * p + 4 * u, ACC + 16 * p + 8 + 4 * u
            A('v_cvt_pk_bf16_f32 %s, %s, %s' % (V(t), V(a0), V(a0 + 1)))
            A('v_cvt_pk_bf16_f32 %s, %s, %s' % (V(t + 1), V(a0 + 2), V(a0 + 3)))
            A('v_cvt_pk_bf16_f32 %s, %s, %s' % (V(t + 2), V(a1), V(a1 + 1)))
            A('v_cvt_pk_bf16_f32 %s, %s, %s' % (V(t + 3), V(a1 + 2), V(a1 + 3)))
            for i in range(4):
                A('v_pk_max_i16 %s, %s, 0' % (V(t + i), V(t + i)))
            s, off = (89, p * 2048 + u * 256) if p < 2 else (64, u * 256)
            A('buffer_store_dwordx4 %s, %s, %s, s%d offen offset:%d' % (V(t, 4), V(vHS), srd(SWS), s, off))
    for u in range(2):
        t = T + 4 * k
        k += 1
        a0 = ACC + 48 + 4 * u
        A('v_cvt_pk_bf16_f32 %s, %s, %s' % (V(t), V(a0), V(a0 + 1)))
        A('v_cvt_pk_bf16_f32 %s, %s, %s' % (V(t + 1), V(a0 + 2), V(a0 + 3)))
        for i in range(2):
            A('v_pk_max_i16 %s, %s, 0' % (V(t + i), V(t + i)))
        A('buffer_store_dwordx2 %s, %s, %s, s64 offen offset:%d' % (V(t, 2), V(vHS1), srd(SWS), 2048 + u * 256))
    publish(sMYFL, 4 * layer + 3)
    stamp('h published')


def p4(layer):
    V = vr
    ACC1, ACC0, HR = 88, 120, 152
    NH = 24
    if layer == 0:
        A('s_lshl_b32 s87, s%d, 13' % sW)
        A('s_add_u32 s87, s87, %d' % SCR)
        stage_bases('s87')
        read_w2(W2B[2], W2B[0], vA, vB, 0)
        A.wait(lg='all')
        barrier()
        A('s_mul_i32 s86, s%d, 24576' % sW)
        dma_stage(SW2, ('s92', W2C1[0] * 1024), W2C1[1], 's86', 0, 'STG')
        dma_stage(SW2, ('s92', W2C2[0] * 1024), W2C2[1], 's87', 0, 'STG')
        A.wait(vm='all')
        read_w2(W2C2[2], W2C2[0], vA, vB, 0)
        A.wait(lg='all')
        stage_bases('s86')
        read_w2(W2C1[2], W2C1[0], vA, vB, 0)
        A.wait(lg='all')
        barrier()
    A('s_mul_i32 s86, s%d, 112' % sTTO)
    A('s_xor_b32 s87, s%d, 1' % sTTO)
    A('s_mul_i32 s87, s87, 112')
    A('s_mul_i32 s85, s%d, 28' % sW)
    A('s_add_u32 s86, s86, s85')
    A('s_add_u32 s87, s87, s85')
    A('s_lshl_b32 s86, s86, 10')
    A('s_lshl_b32 s87, s87, 10')
    A('s_add_u32 s86, s86, %d' % (HF + layer * LSEP))
    A('s_add_u32 s87, s87, %d' % (HF + layer * LSEP))
    if layer == 0:
        A('s_mul_i32 s64, s%d, %d' % (sW, 8 * 49152))
        A('s_lshl_b32 s65, s%d, 6' % sJ)
        A('s_add_u32 s64, s64, s65')
        A('s_mul_i32 s65, s%d, 24576' % sW)
    poll(vPC, 4 * layer + 3)
    stamp('p4 poll ok')

    def hload(n):
        tp, ks = divmod(n, 28)
        s = 87 if tp == 0 else 86
        if ks % 4 == 0 and ks:
            A('s_add_u32 s%d, s%d, 4096' % (s, s))
        A('buffer_load_dwordx4 %s, %s, %s, s%d offen offset:%d sc1' % (V(HR + 4 * (n % NH), 4), V(vL16), srd(SWS), s, (ks % 4) * 1024), ('H', n))

    for n in range(NH):
        hload(n)
    nb1 = 0
    for n in range(56):
        tp, ks = divmod(n, 28)
        acc = ACC1 if tp == 0 else ACC0
        A.wait(vm=('H', n))
        H = V(HR + 4 * (n % NH), 4)
        for ct in (1, 0):
            mfma32(V(acc + 16 * ct, 16), w2_frag(ks, ct), H, '0' if ks == 0 else V(acc + 16 * ct, 16))
        if n + NH < 56:
            hload(n + NH)
        if layer == 0 and n % 4 == 1 and nb1 < 8:
            dma_b1_step('s64', 's65', 'B1')
            A('s_add_u32 s64, s64, 49152')
            A('s_add_u32 s65, s65, 3072')
            nb1 += 1
        if 32 <= n < 40:
            k = n - 32
            A('ds_write_b128 %s, %s offset:%d' % (V(vSC2), V(ACC1 + 4 * k, 4), k * 1024))
        if n == 46:
            A.wait(lg='all')
            barrier()
            for k in range(8):
                A('ds_read_b128 %s, %s offset:%d' % (V(ACC1 + 4 * k, 4), V(vSC0), k * 1024), 'INC')
            A('s_and_b32 s84, s%d, 3' % sTTO)
            A('s_lshl_b32 s84, s84, 7')
            A('s_add_u32 s84, s84, %d' % RS3)
            A('v_and_b32 %s, 31, v0' % V(vB))
            A('v_lshl_add_u32 %s, %s, 2, s84' % (V(vB), V(vB)))
            A('ds_read_b32 v248, %s' % V(vB), 'INC')
    stamp('p4 loop done')
    ksplit_tail(ACC0, ACC1)
    for i in range(8):
        A('v_pk_fma_f32 %s, %s, v[248:249], %s op_sel_hi:[1,0,1]' % (V(vRES + 2 * i, 2), V(ACC0 + 2 * i, 2), V(vRES + 2 * i, 2)))
    P = 152
    pack_and_stats(P, 0)
    if layer == 0:
        A('s_lshl_b32 s84, s%d, 15' % sTTO)
        A('s_lshl_b32 s85, s%d, 12' % sCG)
        A('s_add_u32 s84, s84, s85')
        A('s_and_b32 s85, s%d, 1' % sW)
        A('s_lshl_b32 s85, s85, 11')
        A('s_add_u32 s84, s84, s85')
        A('s_add_u32 s84, s84, %d' % XF)
        A('buffer_store_dwordx4 %s, %s, %s, s84 offen' % (V(P, 4), V(vL16), srd(SWS)))
        A('buffer_store_dwordx4 %s, %s, %s, s84 offen offset:1024' % (V(P + 4, 4), V(vL16), srd(SWS)))
        stats_store(P, 160, ST2)
        publish(sMYFL, 4)
        stamp('x2 published')
    else:
        for J in range(4):
            A('buffer_store_dwordx2 %s, %s, %s, s93 offen offset:%d' % (V(P + 2 * J, 2), V(vOUT), srd(SOUT), J * 16))


def main():
    out = sys.argv[1]
    prologue()
    step = 0
    seq = [lambda: p1_l1(), lambda: p1_tail(0), lambda: reducer(0), lambda: p2(0), lambda: p3(0), lambda: p4(0),
           lambda: p1_l2(1), lambda: p1_tail(1), lambda: reducer(1), lambda: p2(1), lambda: p3(1), lambda: p4(1)]
    for f in seq[:OPT['stop']]:
        f()
    if OPT['stamps']:
        stamp('end')
        A('s_lshl_b32 s84, s2, 2')
        A('s_add_u32 s84, s84, s%d' % sW)
        A('s_lshl_b32 s84, s84, 8')
        A('s_add_u32 s84, s84, %d' % STAMP)
        A('v_lshlrev_b32 %s, 2, v0' % vr(vA))
        A('buffer_store_dword %s, %s, %s, s84 offen' % (vr(vSTAMP), vr(vA), srd(SWS)))
    A.label('Lend')
    A('s_endpgm')
    pads = A.pad_hazards_fast()
    head = open('interleave_layers__linear_attn_block__dense_activation_relu__prompt.s.ref').read().split('\n')
    hdr = [l for l in head if l.startswith(';') and '@launch' not in l and 'Override' not in l and 'grid=ceil' not in l]
    txt = '\n'.join(hdr) + '\n'
    txt += '; @launch grid=(256,1,1) block=(256,1,1) lds=%d\n' % LDS_BYTES
    if OPT['stamps']:
        txt += '; stamps: ' + '|'.join(stamp_names) + '\n'
    txt += '.amdgcn_target "amdgcn-amd-amdhsa--gfx950"\n.text\n.globl %s\n.p2align 8\n.type %s,@function\n%s:\n' % (KNAME, KNAME, KNAME)
    txt += A.text()
    txt += '''.section .rodata,"a"
.p2align 6
.amdhsa_kernel %s
  .amdhsa_next_free_vgpr 512
  .amdhsa_next_free_sgpr 102
  .amdhsa_accum_offset 256
  .amdhsa_group_segment_fixed_size 0
  .amdhsa_kernarg_size 72
  .amdhsa_user_sgpr_count 2
  .amdhsa_user_sgpr_kernarg_segment_ptr 1
  .amdhsa_system_sgpr_workgroup_id_x 1
.end_amdhsa_kernel
''' % KNAME
    open(out, 'w').write(txt)
    n = sum(1 for i in A.ins if i.kind not in ('label', 'dir'))
    print('instructions', n, 'hazard pad states', pads, file=sys.stderr)


main()
```

```python
import sys
from asmfw import Asm, vr, ar, sr

KNAME = 'interleave_layers__linear_attn_block__dense_activation_relu__prompt_kernel'

OPT = dict(stamps=0, force_slow=0, sep=0, stop=99,
           p0g=1, p0s=3, xtg=6, t1g=6, t2=1, tnt=0, pnt=1, xnt=0, rot1=0,
           k_pq=16, k_kf=0, k_p2=12, k_x1=0, k_p3=0, k_h=4,
           a_kf=0, a_p2=7, a_x1=4,
           b1_h=0, b1_p4=8, b1_x2=4,
           b3_c=6, b3_pq=0, b3_kf=0, b3_p2=12, b3_x1=3,
           nb=5, wb=1, skew=4, lead4=10)
for a in sys.argv[2:]:
    k, v = a.split('=')
    assert k in OPT, k
    OPT[k] = int(v)

KVP_RS = 640
KVP = 0
FLB = 0xA0000
XT = 0xA2000
KVF = 0x140000
ST1 = 0x180000
ST2 = 0x1C0000
X1F = 0x400000
HF = 0x800000
STAMP = 0xF00000
WPQ = 0x1000000
WPO = 0x1180000
WP1 = 0x1200000
WP2 = 0x1400000
if OPT['sep']:
    aKVF, aST1, aX1F, aHF, aPQ = (KVF, 0x1800000), (ST1, 0x1840000), (X1F, 0x1A00000), (HF, 0x3000000), (0x2000000, 0x2800000)
    XF = 0x600000
else:
    aKVF, aST1, aX1F, aHF, aPQ = (KVF, KVF), (ST1, ST1), (X1F, X1F), (HF, HF), (HF, HF)
    XF, ST2 = X1F, ST1
WS_BYTES = 0x4000000
XS = 98304
BT = 98304
SCR = 114688
MISC = 147456
CR1 = 0
CR3 = 1024
RS1 = 2048
RS3 = 2560
SLAB = MISC + 4096
SLAB_ST = 2304
LDS_BYTES = 163840
SX, SQKV, SOUT, SWS, SDBG, SP0, SP1 = 4, 8, 12, 16, 20, 24, 28
sW, sXCD, sU, sRBL, sJ, sRB, sRG, sCG, sSLOW, sFLB, sMYFL, sMYKFL, sCNT, sXCC, sTTO, sROT = range(32, 48)
sEPS, sL2E, sMLO, sM0, sM1, sB4 = 48, 50, 52, 54, 56, 58
sOUTO, sXST, sSTS, sTW = 60, 61, 62, 63
sWa, sWb, sBg, sBl, sBt, sR4, sKVPO, sSLABW = 64, 65, 66, 67, 68, 69, 70, 71
(vL, vL16, vPA, vPB, vPC, vWC0, vWC1, vFREE1, vFREE2, vB3T, vL16H, vHS1, vSTS, vSTL, vKVL, vOUT,
 vCRR, vCRT, vSC0, vSC2, vSC1, vSLW, vSLZ, vRS1R, vRSW, vRS3R, vSLR, vL8, vL4, vSTAMP, vA, vB) = range(32)
vRES = 32
vWO2 = 48
LOC = 80
vSC3 = vPA
vPK = 255

LIMIT = 200000
A = Asm()
V = vr
nstamp = [0]
stamp_names = []


def srd(b):
    return sr(b, 4)


def stamp(name):
    if not OPT['stamps']:
        return
    A('s_memtime s[94:95]')
    A.raw('s_waitcnt lgkmcnt(0)')
    A.lgq.clear()
    A('v_writelane_b32 %s, s94, %d' % (V(vSTAMP), nstamp[0]))
    stamp_names.append(name)
    nstamp[0] += 1


def rstamp(idx):
    if not OPT['stamps']:
        return
    A('s_memrealtime s[94:95]')
    A.raw('s_waitcnt lgkmcnt(0)')
    A.lgq.clear()
    A('v_writelane_b32 %s, s94, %d' % (V(vSTAMP), idx))


def mfma32(d, a, b, c):
    A('v_mfma_f32_32x32x16_bf16 %s, %s, %s, %s' % (d, a, b, c))


def mfma16(d, a, b, c):
    A('v_mfma_f32_16x16x32_bf16 %s, %s, %s, %s' % (d, a, b, c))


def barrier():
    A('s_barrier')


def spin_guard():
    A('s_add_u32 s%d, s%d, 1' % (sCNT, sCNT))
    A('s_cmp_gt_u32 s%d, %d' % (sCNT, LIMIT))
    A('s_cbranch_scc1 Lend')


def poll(vaddr, epoch):
    A('s_mov_b32 s%d, 0' % sCNT)
    L = A.label()
    A('buffer_load_dword %s, %s, %s, s%d offen sc1' % (V(vA), V(vaddr), srd(SWS), sFLB))
    spin_guard()
    A.wait(vm='all')
    A('v_cmp_gt_i32 vcc, %d, %s' % (epoch, V(vA)))
    A('s_cbranch_vccnz %s' % L)
    L2 = A.newlabel()
    A('s_cmp_eq_u32 s%d, 0' % sSLOW)
    A('s_cbranch_scc1 %s' % L2)
    A.raw('buffer_inv sc1')
    A.raw('s_waitcnt vmcnt(0)')
    A.label(L2)


def publish(sflag, epoch):
    A('v_mov_b32 %s, %d' % (V(vA), epoch))
    Ls, Le = A.newlabel(), A.newlabel()
    A('s_mov_b64 exec, 1')
    A('s_cmp_lg_u32 s%d, 0' % sSLOW)
    A.wait(vm='PUB')
    A('s_cbranch_scc1 %s' % Ls)
    A('buffer_store_dword %s, off, %s, s%d' % (V(vA), srd(SWS), sflag))
    A('s_branch %s' % Le)
    A.label(Ls)
    A.raw('buffer_wbl2 sc1')
    A.raw('s_waitcnt vmcnt(0)')
    A.raw('buffer_store_dword %s, off, %s, s%d sc1' % (V(vA), srd(SWS), sflag))
    A.label(Le)
    A('s_mov_b64 exec, -1')


def wo_frag(hh, ct):
    i = hh * 2 + ct
    return ar(224 + 4 * i, 4) if i < 8 else V(vWO2 + 4 * (i - 8), 4)


def w2_frag(ks, ct):
    return ar((ks * 2 + ct) * 4, 4)


class Stream:
    def __init__(self, name, items):
        self.name, self.items, self.issued, self.synced = name, items, 0, 0

    def pump(self, n=1):
        for _ in range(n):
            if self.issued >= len(self.items):
                return
            self.items[self.issued][1]((self.name, self.issued))
            self.issued += 1

    def left(self):
        return len(self.items) - self.issued

    def upto(self, g):
        return sum(1 for gg, _ in self.items if gg <= g)

    def force(self, g):
        self.pump(max(0, self.upto(g) - self.issued))

    def landed(self):
        pend = [t[1] for t in A.vmq if isinstance(t, tuple) and t[0] == self.name]
        return min(pend) if pend else self.issued

    def barriered(self):
        self.synced = self.landed()

    def sync(self, g):
        need = self.upto(g)
        if self.synced >= need:
            return
        self.force(g)
        A.wait(vm=(self.name, need - 1))
        barrier()
        self.synced = self.landed()


def make_w_stream():
    items = []

    def wo_item(hh, ct):
        def f(tag):
            if ct == 0:
                if hh == 0:
                    A('s_lshl_b32 s%d, s%d, 17' % (sWa, sW))
                    A('s_lshl_b32 s%d, s%d, 11' % (sWb, sCG))
                    A('s_add_u32 s%d, s%d, s%d' % (sWa, sWa, sWb))
                    A('s_add_u32 s%d, s%d, %d' % (sWa, sWa, WPO))
                else:
                    A('s_add_u32 s%d, s%d, 16384' % (sWa, sWa))
            A('buffer_load_dwordx4 %s, %s, %s, s%d offen sc1' % (wo_frag(hh, ct), V(vWC1 if ct else vWC0), srd(SWS), sWa), tag)
        return f

    for hh in range(8):
        for ct in range(2):
            items.append((0, wo_item(hh, ct)))

    def w2_item(ks, ct):
        def f(tag):
            if ct == 0:
                if ks == 0:
                    A('s_mul_i32 s%d, s%d, %d' % (sWa, sW, 28 * 16384))
                    A('s_add_u32 s%d, s%d, s%d' % (sWa, sWa, sWb))
                    A('s_add_u32 s%d, s%d, %d' % (sWa, sWa, WP2))
                else:
                    A('s_add_u32 s%d, s%d, 16384' % (sWa, sWa))
            A('buffer_load_dwordx4 %s, %s, %s, s%d offen sc1' % (w2_frag(ks, ct), V(vWC1 if ct else vWC0), srd(SWS), sWa), tag)
        return f

    for ks in range(28):
        for ct in range(2):
            items.append((1 + ks, w2_item(ks, ct)))
    return Stream('W', items)


def make_b_stream(name, p3, tail):
    items = []
    KS = 57344 if p3 else 49152

    def main_item(i, t):
        def f(tag):
            if t == 0:
                if i == 0:
                    A('s_mul_i32 s%d, s%d, 3072' % (sBg, sJ))
                    A('s_mul_i32 s%d, s%d, %d' % (sBl, sW, KS))
                    A('s_add_u32 s%d, s%d, s%d' % (sBg, sBg, sBl))
                    A('s_add_u32 s%d, s%d, %d' % (sBg, sBg, WP1 if p3 else WPQ))
                    A('s_mul_i32 s%d, s%d, 3072' % (sBl, sW))
                else:
                    A('s_add_u32 s%d, s%d, %d' % (sBg, sBg, 4 * KS))
                A('s_add_u32 m0, s%d, %d' % (sBl, i * 12288))
            A('buffer_load_dwordx4 %s, %s, s%d offen offset:%d sc1 lds' % (V(vL16), srd(SWS), sBg, t * 1024), tag)
        return f

    def tail_item(g):
        def f(tag):
            if g == 0:
                A('s_lshr_b32 s%d, s%d, 1' % (sBt, sJ))
                A('s_lshl_b32 s%d, s%d, 10' % (sBt, sBt))
                A('s_lshl_b32 s96, s%d, 8' % sRG)
                A('s_add_u32 s%d, s%d, s96' % (sBt, sBt))
                A('s_mul_i32 s96, s%d, %d' % (sW, 2 * KS))
                A('s_add_u32 s%d, s%d, s96' % (sBt, sBt))
                A('s_add_u32 s%d, s%d, %d' % (sBt, sBt, WP1 + 48 * 1024))
            else:
                A('s_add_u32 s%d, s%d, %d' % (sBt, sBt, 8 * KS))
            A('s_lshl_b32 s96, s%d, 10' % sW)
            A('s_add_u32 m0, s96, %d' % (BT + g * 4096))
            A('buffer_load_dwordx4 %s, %s, s%d offen sc1 lds' % (V(vB3T), srd(SWS), sBt), tag)
        return f

    for i in range(8):
        if tail and i % 2 == 0:
            items.append((i, tail_item(i // 2)))
        for t in range(3):
            items.append((i, main_item(i, t)))
    return Stream(name, items)


WS_ = make_w_stream()
B3a = make_b_stream('B3a', True, True)
B1b = make_b_stream('B1b', False, False)
B3b = make_b_stream('B3b', True, False)

accQ, accK, accV = 80, 96, 112
G16, S4, C4, SEL, WR1, XA = 128, 144, 148, 152, 156, 188
XRD, XD, BD, TN, PD, PT = 220, 224, 226, 229, 233, 236
RAW = 240
MEAN1, RSTD1, MF1 = 248, 250, 252
sXG, sXL, sQJ, sQL, sCT = 72, 73, 74, 75, 76
sPsrc, sPdst, sPdd, sPL = 77, 80, 83, 86


def prologue():
    A('s_cmp_ge_u32 s2, 256')
    A('s_cbranch_scc1 Lend')
    for b, off in ((SX, 0), (SQKV, 8), (SWS, 64), (98, 16), (SP0, 32), (SP1, 40), (SOUT, 48), (SDBG, 56)):
        A('s_load_dwordx2 s[%d:%d], s[0:1], %d' % (b, b + 1, off))
    A('s_getpc_b64 s[82:83]')
    A.label('Lpc')
    A('s_lshr_b32 s%d, s2, 3' % sU)
    A('s_lshl_b32 s84, s%d, 12' % sU)
    A('v_and_b32 %s, 31, v0' % V(vA))
    A('v_lshlrev_b32 %s, 7, %s' % (V(vA), V(vA)))
    A('v_add_u32 %s, s84, %s' % (V(vA), V(vA)))
    A('v_min_u32 %s, Lend-Lpc, %s' % (V(vA), V(vA)))
    A('v_cmp_gt_u32 vcc, 32, v0')
    A('s_and_saveexec_b64 s[84:85], vcc')
    Lx = A.newlabel()
    A('s_cbranch_execz %s' % Lx)
    A.raw('global_load_dword %s, %s, s[82:83]' % (V(239), V(vA)))
    A.label(Lx)
    A('s_mov_b64 exec, -1')
    A('v_lshrrev_b32 %s, 6, v0' % V(vA))
    A('v_and_b32 v0, 63, v0')
    A('v_readfirstlane_b32 s%d, %s' % (sW, V(vA)))
    A('s_and_b32 s%d, s2, 7' % sXCD)
    A('s_and_b32 s%d, s%d, 1' % (sRBL, sU))
    A('s_lshr_b32 s%d, s%d, 1' % (sJ, sU))
    A('s_lshl_b32 s%d, s%d, 1' % (sRB, sXCD))
    A('s_add_u32 s%d, s%d, s%d' % (sRB, sRB, sRBL))
    A('s_and_b32 s%d, s%d, 1' % (sRG, sJ))
    A('s_lshr_b32 s%d, s%d, 1' % (sCG, sJ))
    A('s_lshl_b32 s84, s%d, 1' % sRG)
    A('s_add_u32 s84, s84, s%d' % sRBL)
    A('s_lshl_b32 s84, s84, 1')
    A('s_add_u32 s%d, s84, s%d' % (sROT, sCG))
    if not OPT['rot1']:
        A('s_mov_b32 s%d, 0' % sROT)
    A('s_lshl_b32 s%d, s%d, 2' % (sTW, sRB))
    A('s_add_u32 s%d, s%d, s%d' % (sTW, sTW, sW))
    A('v_lshlrev_b32 %s, 4, v0' % V(vL16))
    if OPT['stamps']:
        A('v_mov_b32 %s, 0' % V(vSTAMP))
    t0, t1 = LOC, LOC + 1
    for i in range(3):
        d = BD + i
        A('v_add_u32 %s, %d, v0' % (V(vA), 64 * i))
        A('v_mul_u32_u24 %s, 5462, %s' % (V(d), V(vA)))
        A('v_lshrrev_b32 %s, 16, %s' % (V(d), V(d)))
        A('v_mul_u32_u24 %s, 12, %s' % (V(t0), V(d)))
        A('v_sub_u32 %s, %s, %s' % (V(t0), V(vA), V(t0)))
        A('v_mul_u32_u24 %s, 3072, %s' % (V(d), V(d)))
        A('v_lshrrev_b32 %s, 2, %s' % (V(t1), V(t0)))
        A('v_lshl_add_u32 %s, %s, 10, %s' % (V(d), V(t1), V(d)))
        A('v_and_b32 %s, 3, %s' % (V(t0), V(t0)))
        A('v_lshl_add_u32 %s, %s, 4, %s' % (V(d), V(t0), V(d)))
    A('v_lshrrev_b32 %s, 4, v0' % V(vA))
    A('v_and_b32 %s, 7, v0' % V(t0))
    A('v_xor_b32 %s, %s, %s' % (V(t1), V(t0), V(vA)))
    A('v_lshlrev_b32 %s, 4, %s' % (V(t1), V(t1)))
    A('v_lshrrev_b32 %s, 3, v0' % V(vB))
    A('v_lshl_add_u32 %s, %s, 10, %s' % (V(XD), V(vB), V(t1)))
    A('v_xor_b32 %s, 64, %s' % (V(XD + 1), V(XD)))
    A('v_and_b32 %s, 1, %s' % (V(vA), V(vA)))
    A('v_lshlrev_b32 %s, 2, %s' % (V(vA), V(vA)))
    A('v_xor_b32 %s, %s, %s' % (V(t0), V(t0), V(vA)))
    A('v_lshlrev_b32 %s, 4, %s' % (V(t0), V(t0)))
    A('v_mul_u32_u24 %s, 3072, %s' % (V(PD + 2), V(vB)))
    A('v_add_u32 %s, %s, %s' % (V(PD + 2), V(PD + 2), V(t0)))
    A('v_lshl_add_u32 %s, %s, 10, %s' % (V(PD + 1), V(vB), V(t0)))
    A('v_mul_u32_u24 %s, 3584, %s' % (V(PD), V(vB)))
    A('v_add_u32 %s, %s, %s' % (V(PD), V(PD), V(t0)))
    A('s_lshl_b32 s87, s2, 2')
    A('s_add_u32 s87, s87, s%d' % sW)
    A('s_sub_u32 s88, s87, 256')
    A('s_cmp_lt_u32 s87, 768')
    A('s_cselect_b32 s88, s87, s88')
    A('s_mul_i32 s89, s88, 2731')
    A('s_lshr_b32 s89, s89, 16')
    A('s_mul_i32 s90, s89, 24')
    A('s_sub_u32 s90, s88, s90')
    A('s_mul_i32 s91, s89, 49152')
    A('s_lshl_b32 s92, s90, 7')
    A('s_add_u32 s91, s91, s92')
    A('s_and_b32 s92, s90, 7')
    A('s_mul_i32 s92, s92, 6')
    A('s_lshr_b32 s93, s90, 3')
    A('s_add_u32 s92, s92, s93')
    A('s_mul_i32 s93, s89, 48')
    A('s_add_u32 s92, s92, s93')
    A('s_lshl_b32 s92, s92, 10')
    A('s_add_u32 s92, s92, %d' % WPQ)
    sizes = {SX: 2097152, SQKV: 1572864, SOUT: 2097152, SDBG: 256, SWS: WS_BYTES}
    for b in (SQKV, SX, SWS, SOUT, SDBG):
        A('s_mov_b32 s%d, %d' % (b + 2, sizes[b]))
        A('s_mov_b32 s%d, 0x20000' % (b + 3))
    A('s_mov_b32 s%d, s91' % (sPsrc + 2))
    A('s_mov_b32 s%d, s92' % (sPdst + 2))
    A('s_lshl_b32 s%d, s%d, 12' % (sPL, sW))
    A('s_add_u32 s%d, s%d, %d' % (sPL, sPL, MISC))
    A('s_lshl_b32 s%d, s%d, 15' % (sXG, sTW))
    A('s_mul_i32 s%d, s%d, 12288' % (sXL, sW))
    A('s_add_u32 s%d, s%d, %d' % (sXL, sXL, XS))
    A('s_lshl_b32 s%d, s%d, 6' % (sQJ, sJ))
    A('s_mul_i32 s88, s%d, 49152' % sW)
    A('s_add_u32 s%d, s%d, s88' % (sQJ, sQJ))
    A('s_mul_i32 s%d, s%d, 3072' % (sQL, sW))
    A.raw('s_waitcnt lgkmcnt(0)')
    stamp('start')
    rstamp(62)


def p0_load(u, tag):
    sd = (SP0, SP1, SQKV)[u]
    sl, lo = ((sPL, 2048), (sQL, 86016), (sPL, 0))[u]
    nt = 'nt ' if (OPT['pnt'] and u != 2) else ''
    A('s_add_u32 m0, s%d, %d' % (sl, lo))
    A('buffer_load_dwordx4 %s, %s, s%d offen %slds' % (V(PD + u), srd(sd), sPsrc + u, nt), tag)
    if u == 0:
        A('s_add_u32 s96, s%d, s97' % (sPsrc + u))
    else:
        A('s_add_u32 s96, s%d, %d' % (sPsrc + u, 8192 if u == 1 else 8 * 3072))
    A('s_add_u32 m0, s%d, %d' % (sl, lo + 1024))
    A('buffer_load_dwordx4 %s, %s, s96 offen %slds' % (V(PD + u), srd(sd), nt), tag)


def p0_reads(u):
    lo = 2048 if u == 0 else 0
    r = []
    for ct in range(2):
        f = vWO2 + 8 * u + 4 * ct
        b = (vFREE1 if u == 1 else PT) + ct
        r.append(('ds_read_b64_tr_b16 %s, %s offset:%d' % (V(f, 2), V(b), lo), None))
        r.append(('ds_read_b64_tr_b16 %s, %s offset:%d' % (V(f + 2, 2), V(b), lo + 1024), ('P0R', u)))
    return r


def p0_stores(u):
    A.wait(lg=('P0R', u))
    f = vWO2 + 8 * u
    A('buffer_store_dwordx4 %s, %s, %s, s%d offen sc1' % (V(f, 4), V(vL16), srd(SWS), sPdst + u))
    A('buffer_store_dwordx4 %s, %s, %s, s%d offen offset:%d sc1' % (V(f + 4, 4), V(vL16), srd(SWS), sPdst + u, 3072 if u == 2 else 1024), 'P0S')


def x_items(c):
    def mk(i):
        def f():
            if i == 0:
                A('s_add_u32 s88, s%d, %d' % (sROT, c))
                A('s_and_b32 s88, s88, 7')
                A('s_lshl_b32 s88, s88, 7')
                A('s_add_u32 s88, s88, s%d' % sXG)
            else:
                A('s_add_u32 s88, s88, 8192')
            A('s_add_u32 m0, s%d, %d' % (sXL, (c % 3) * 4096 + i * 1024))
            A('buffer_load_dwordx4 %s, %s, s88 offen %slds' % (V(XD + (i & 1)), srd(SX), 'nt ' * (OPT['xnt'] & 1)), ('X', c))
        return f
    return [mk(i) for i in range(4)]


def b_items(c):
    def mk(i):
        def f():
            if i == 0:
                A('s_add_u32 s89, s%d, %d' % (sROT, c))
                A('s_and_b32 s89, s89, 7')
                A('s_mul_i32 s89, s89, %d' % (4 * 49152))
                A('s_add_u32 s89, s89, s%d' % sQJ)
            A('s_add_u32 m0, s%d, %d' % (sQL, c * 12288 + i * 1024))
            A('buffer_load_dwordx4 %s, %s, s89 offen lds' % (V(BD + i), srd(SQKV)), ('B', c))
        return f
    return [mk(i) for i in range(3)]


def setup_addrs():
    t0, t1, t2, t3, t4, t5, u0, u1, cp = range(LOC, LOC + 9)
    for r, v in ((sEPS, 0x358637bd), (sL2E, 0x3fb8aa3b)):
        A('s_mov_b32 s%d, 0x%x' % (r, v))
        A('s_mov_b32 s%d, 0x%x' % (r + 1, v))
    for r, lo, hi in ((sMLO, -1, 0), (sM0, 0xffff, 0), (sM1, 0xffff0000, 0), (sB4, 0xffff0000, 0xffff0000)):
        A('s_mov_b32 s%d, %d' % (r, lo))
        A('s_mov_b32 s%d, %d' % (r + 1, hi))
    A('s_mov_b32 s%d, %d' % (sSLOW, OPT['force_slow']))
    A('s_getreg_b32 s%d, hwreg(HW_REG_XCC_ID)' % sXCC)
    A('s_and_b32 s%d, s%d, 15' % (sXCC, sXCC))
    A('s_cmp_lt_u32 s87, 896')
    for b in (SP0, SP1):
        A('s_cselect_b32 s%d, s%d, s98' % (b, b))
        A('s_cselect_b32 s%d, s%d, s99' % (b + 1, b + 1))
        A('s_mov_b32 s%d, 0x20000' % (b + 3))
    A('s_mov_b32 s90, 1835008')
    A('s_cselect_b32 s%d, s90, 524288' % (SP0 + 2))
    A('s_mov_b32 s%d, s%d' % (SP1 + 2, SP0 + 2))
    A('s_mul_i32 s90, s87, 2341')
    A('s_lshr_b32 s90, s90, 16')
    A('s_mul_i32 s91, s90, 28')
    A('s_sub_u32 s91, s87, s91')
    A('s_mul_i32 s92, s90, %d' % (16 * 3584))
    A('s_lshl_b32 s93, s91, 7')
    A('s_add_u32 s%d, s92, s93' % sPsrc)
    A('s_lshl_b32 s92, s87, 11')
    A('s_add_u32 s%d, s92, %d' % (sPdst, WP1))
    A('s_lshr_b32 s90, s87, 3')
    A('s_and_b32 s91, s87, 7')
    A('s_lshl_b32 s92, s90, 14')
    A('s_lshl_b32 s93, s91, 7')
    A('s_add_u32 s%d, s92, s93' % (sPsrc + 1))
    A('s_mul_i32 s92, s90, 10923')
    A('s_lshr_b32 s92, s92, 16')
    A('s_add_u32 s92, s92, s90')
    A('s_mul_i32 s93, s90, 7')
    A('s_sub_u32 s93, s93, %d' % (7 * 96 - 6))
    A('s_cmp_lt_u32 s90, 96')
    A('s_cselect_b32 s92, s92, s93')
    A('s_lshl_b32 s92, s92, 14')
    A('s_lshl_b32 s93, s91, 11')
    A('s_add_u32 s92, s92, s93')
    A('s_add_u32 s%d, s92, %d' % (sPdst + 1, WP2))
    A('s_mov_b32 s97, %d' % (8 * 3584))
    Lw = A.newlabel()
    A('s_cmp_lt_u32 s87, 896')
    A('s_cbranch_scc1 %s' % Lw)
    A('s_sub_u32 s90, s90, 112')
    A('s_lshl_b32 s92, s90, 14')
    A('s_lshl_b32 s93, s91, 7')
    A('s_add_u32 s%d, s92, s93' % sPsrc)
    A('s_add_u32 s%d, s%d, %d' % (sPsrc + 1, sPsrc, 16 * 16384))
    A('s_lshl_b32 s93, s91, 11')
    A('s_add_u32 s92, s92, s93')
    A('s_add_u32 s%d, s92, %d' % (sPdst, WPO))
    A('s_add_u32 s%d, s%d, %d' % (sPdst + 1, sPdst, 16 * 16384))
    A('s_mov_b32 s97, 8192')
    A('v_mov_b32 %s, %s' % (V(PD), V(PD + 1)))
    A.label(Lw)
    A('s_lshl_b32 s%d, s%d, 10' % (sFLB, sXCD))
    A('s_add_u32 s%d, s%d, %d' % (sFLB, sFLB, FLB))
    A('s_lshl_b32 s90, s%d, 4' % sRBL)
    A('s_add_u32 s90, s90, s%d' % sJ)
    A('s_lshl_b32 s90, s90, 2')
    A('s_add_u32 s90, s90, s%d' % sW)
    A('s_lshl_b32 s90, s90, 2')
    A('s_add_u32 s%d, s%d, s90' % (sMYFL, sFLB))
    A('s_lshl_b32 s90, s%d, 2' % sU)
    A('s_add_u32 s90, s90, s%d' % sW)
    A('s_lshl_b32 s90, s90, 2')
    A('s_add_u32 s90, s90, 512')
    A('s_add_u32 s%d, s%d, s90' % (sMYKFL, sFLB))
    A('s_lshl_b32 s%d, s%d, 2' % (sTTO, sRB))
    A('s_lshl_b32 s90, s%d, 1' % sRG)
    A('s_add_u32 s%d, s%d, s90' % (sTTO, sTTO))
    A('s_lshr_b32 s90, s%d, 1' % sW)
    A('s_add_u32 s%d, s%d, s90' % (sTTO, sTTO))
    A('s_and_b32 s91, s%d, 1' % sW)
    A('s_lshl_b32 s90, s%d, 15' % sTTO)
    A('s_lshl_b32 s92, s%d, 7' % sCG)
    A('s_add_u32 s%d, s90, s92' % sOUTO)
    A('s_lshl_b32 s92, s91, 6')
    A('s_add_u32 s%d, s%d, s92' % (sOUTO, sOUTO))
    A('s_lshl_b32 s92, s%d, 12' % sCG)
    A('s_add_u32 s%d, s90, s92' % sXST)
    A('s_lshl_b32 s92, s91, 11')
    A('s_add_u32 s%d, s%d, s92' % (sXST, sXST))
    A('s_lshl_b32 s%d, s%d, 12' % (sSTS, sTTO))
    A('s_lshl_b32 s92, s%d, 9' % sCG)
    A('s_add_u32 s%d, s%d, s92' % (sSTS, sSTS))
    A('s_lshl_b32 s92, s91, 3')
    A('s_add_u32 s%d, s%d, s92' % (sSTS, sSTS))
    A('s_lshl_b32 s90, s%d, 1' % sJ)
    A('s_lshr_b32 s92, s%d, 1' % sW)
    A('s_add_u32 s90, s90, s92')
    A('s_lshl_b32 s90, s90, 4')
    A('s_add_u32 s90, s90, s%d' % sRB)
    A('s_mul_i32 s90, s90, %d' % KVP_RS)
    A('s_mul_i32 s92, s91, 272')
    A('s_add_u32 s%d, s90, s92' % sKVPO)
    A('s_mul_i32 s%d, s%d, %d' % (sSLABW, sW, SLAB_ST))
    A('s_add_u32 s%d, s%d, %d' % (sSLABW, sSLABW, SLAB))
    A('v_and_b32 %s, 15, v0' % V(t0))
    A('v_lshrrev_b32 %s, 4, v0' % V(t1))
    A('v_and_b32 %s, 31, v0' % V(t2))
    A('v_lshrrev_b32 %s, 5, v0' % V(t3))
    A('v_bfe_u32 %s, v0, 2, 2' % V(t4))
    A('v_and_b32 %s, 3, v0' % V(t5))
    A('v_bfe_u32 %s, v0, 1, 3' % V(u0))
    A('v_xor_b32 %s, %s, %s' % (V(u0), V(t3), V(u0)))
    A('v_lshlrev_b32 %s, 4, %s' % (V(u0), V(u0)))
    A('v_lshl_add_u32 %s, %s, 7, %s' % (V(u0), V(t2), V(u0)))
    A('v_add_u32 %s, s%d, %s' % (V(XRD), sXL, V(u0)))
    for kk in range(1, 4):
        A('v_xor_b32 %s, %d, %s' % (V(XRD + kk), kk * 32, V(XRD)))
    A('v_and_b32 %s, 1, %s' % (V(u0), V(t1)))
    A('v_lshlrev_b32 %s, 5, %s' % (V(u0), V(u0)))
    A('v_lshl_add_u32 %s, %s, 3, %s' % (V(cp), V(t5), V(u0)))
    A('v_lshl_add_u32 %s, %s, 3, %s' % (V(u1), V(t3), V(t4)))
    A('v_mul_u32_u24 %s, 192, %s' % (V(u1), V(u1)))
    A('v_add_u32 %s, %s, %s' % (V(TN), V(u1), V(cp)))
    A('v_add_u32 %s, 49152, %s' % (V(TN + 1), V(TN)))
    A('s_cmp_eq_u32 s%d, 3' % sW)
    A('s_cselect_b32 s%d, 0, s%d' % (sCT, sW))
    A('s_lshl_b32 s90, s%d, 6' % sCT)
    A('v_add_u32 %s, s90, %s' % (V(TN + 2), V(TN)))
    A('v_add_u32 %s, s90, %s' % (V(TN + 3), V(TN + 1)))
    sel_frag(SEL, u0, u1, t1)
    A('v_lshl_add_u32 %s, %s, 2, %s' % (V(u0), V(t3), V(t4)))
    A('v_lshrrev_b32 %s, 1, %s' % (V(u1), V(t4)))
    A('v_lshlrev_b32 %s, 6, %s' % (V(u1), V(u1)))
    A('v_xor_b32 %s, %s, %s' % (V(u1), V(u1), V(cp)))
    A('v_lshl_add_u32 %s, %s, 7, %s' % (V(u0), V(u0), V(u1)))
    A('v_add_u32 %s, s%d, %s' % (V(PT), sPL, V(u0)))
    A('v_xor_b32 %s, 64, %s' % (V(PT + 1), V(PT)))
    A('s_add_u32 s90, s%d, 86016' % sQL)
    A('v_add_u32 %s, s90, %s' % (V(vFREE1), V(u0)))
    A('v_xor_b32 %s, 64, %s' % (V(vFREE2), V(vFREE1)))
    A('v_bfe_u32 %s, v0, 1, 3' % V(u0))
    A('s_lshl_b32 s90, s91, 2')
    A('v_xor_b32 %s, s90, %s' % (V(u0), V(u0)))
    A('v_lshlrev_b32 %s, 4, %s' % (V(u0), V(u0)))
    A('v_lshl_add_u32 %s, %s, 7, %s' % (V(u0), V(t2), V(u0)))
    A('v_lshl_add_u32 %s, %s, 3, %s' % (V(u0), V(t3), V(u0)))
    A('s_and_b32 s90, s%d, 3' % sTTO)
    A('s_mul_i32 s90, s90, 12288')
    A('s_add_u32 s90, s90, %d' % XS)
    A('v_add_u32 v74, s90, %s' % V(u0))
    for J in range(1, 4):
        A('v_xor_b32 v%d, %d, v74' % (74 + J, 16 * J))
    A('s_sub_u32 s%d, s%d, s%d' % (sR4, sCG, sROT))
    A('s_and_b32 s%d, s%d, 7' % (sR4, sR4))
    A('s_mul_i32 s90, s%d, 56' % sTW)
    A('s_add_u32 s90, s90, s%d' % sJ)
    A('s_lshl_b32 s90, s90, 11')
    A('s_add_u32 s90, s90, %d' % aPQ[0])
    A('v_lshl_add_u32 v72, %s, 7, s90' % V(t0))
    A('s_add_u32 s90, s%d, %d' % (sXST, aX1F[0]))
    A('v_lshl_add_u32 %s, %s, 7, s90' % (V(u0), V(t0)))
    A('v_cndmask_b32 v72, v72, %s, %s' % (V(u0), sr(sB4, 2)))
    A('s_add_u32 s90, s%d, %d' % (sSTS, aST1[0]))
    A('v_lshl_add_u32 %s, %s, 7, s90' % (V(u0), V(t5)))
    A('s_lshl_b32 s90, s%d, 5' % sXCD)
    A('s_add_u32 s90, s90, s%d' % sU)
    A('s_lshl_b32 s90, s90, 10')
    A('s_add_u32 s90, s90, %d' % aKVF[0])
    A('v_min_u32 %s, 4, %s' % (V(u1), V(t0)))
    A('v_lshl_add_u32 %s, %s, 7, s90' % (V(u1), V(u1)))
    A('v_cndmask_b32 %s, %s, %s, %s' % (V(u0), V(u0), V(u1), sr(sB4, 2)))
    A('v_cndmask_b32 v72, %s, v72, %s' % (V(u0), sr(sMLO, 2)))
    A('v_lshlrev_b32 %s, 3, v0' % V(vL8))
    A('v_lshlrev_b32 %s, 2, v0' % V(vL4))
    A('v_add_u32 %s, 49152, %s' % (V(vL16H), V(vL16)))
    A('s_lshl_b32 s90, s91, 10')
    A('v_add_u32 %s, s90, %s' % (V(vWC0), V(vL16)))
    A('v_xor_b32 %s, 1024, %s' % (V(vWC1), V(vWC0)))
    A('v_and_b32 %s, 1, %s' % (V(cp), V(t1)))
    A('v_lshlrev_b32 %s, 4, %s' % (V(u1), V(t0)))
    A('v_mul_u32_u24 %s, 57344, %s' % (V(u0), V(cp)))
    A('v_add_u32 %s, %s, %s' % (V(u0), V(u0), V(u1)))
    A('v_lshl_add_u32 %s, %s, 9, %s' % (V(vB3T), V(t3), V(u0)))
    A('v_lshl_add_u32 %s, %s, 9, %s' % (V(u0), V(cp), V(u1)))
    A('v_lshl_add_u32 %s, %s, 3, %s' % (V(vHS1), V(t3), V(u0)))
    A('v_bfe_u32 %s, v0, 1, 2' % V(u0))
    A('v_lshlrev_b32 %s, 4, %s' % (V(u0), V(u0)))
    A('v_and_b32 %s, 1, v0' % V(u1))
    A('v_lshl_add_u32 %s, %s, 2, %s' % (V(u0), V(u1), V(u0)))
    A('s_lshl_b32 s90, s%d, 8' % sRBL)
    A('s_lshl_b32 s92, s%d, 6' % sW)
    A('s_add_u32 s90, s90, s92')
    A('s_lshl_b32 s92, s%d, 3' % sRG)
    A('s_add_u32 s90, s90, s92')
    A('v_add_u32 %s, s90, %s' % (V(vPC), V(u0)))
    A('v_bfe_u32 %s, v0, 1, 3' % V(u0))
    A('v_lshlrev_b32 %s, 5, %s' % (V(u0), V(u0)))
    A('v_lshl_add_u32 %s, %s, 2, %s' % (V(u0), V(u1), V(u0)))
    A('s_lshl_b32 s90, s%d, 8' % sRBL)
    A('s_lshr_b32 s92, s%d, 1' % sW)
    A('s_lshl_b32 s92, s92, 4')
    A('s_add_u32 s90, s90, s92')
    A('s_lshl_b32 s92, s91, 3')
    A('s_add_u32 s90, s90, s92')
    A('v_add_u32 %s, s90, %s' % (V(vPB), V(u0)))
    A('v_lshlrev_b32 %s, 4, %s' % (V(u0), V(t2)))
    A('v_lshl_add_u32 %s, %s, 2, %s' % (V(vSTS), V(t3), V(u0)))
    A('v_lshl_add_u32 %s, %s, 11, %s' % (V(vSTL), V(t3), V(u0)))
    A('v_min_u32 %s, 16, %s' % (V(u0), V(t2)))
    A('v_lshlrev_b32 %s, 5, %s' % (V(u0), V(u0)))
    A('v_lshl_add_u32 %s, %s, 4, %s' % (V(vKVL), V(t3), V(u0)))
    A('v_lshlrev_b32 %s, 10, %s' % (V(u0), V(t2)))
    A('v_lshl_add_u32 %s, %s, 4, %s' % (V(vOUT), V(t3), V(u0)))
    A('v_lshlrev_b32 %s, 3, %s' % (V(u0), V(t2)))
    A('v_add_u32 %s, %d, %s' % (V(vCRR), MISC, V(u0)))
    A('v_lshlrev_b32 %s, 3, %s' % (V(u0), V(t0)))
    A('v_add_u32 %s, %d, %s' % (V(vCRT), MISC, V(u0)))
    for reg, x in ((vSC0, 0), (vSC2, 2), (vSC1, 1), (vSC3, 3)):
        A('s_xor_b32 s90, s%d, %d' % (sW, x))
        A('s_lshl_b32 s90, s90, 13')
        A('s_add_u32 s90, s90, %d' % SCR)
        A('v_add_u32 %s, s90, %s' % (V(reg), V(vL16)))
    A('v_mul_u32_u24 %s, 1088, %s' % (V(u0), V(cp)))
    A('v_add_u32 %s, s%d, %s' % (V(u0), sSLABW, V(u0)))
    A('v_lshl_add_u32 %s, %s, 6, %s' % (V(u1), V(t0), V(u0)))
    A('v_lshl_add_u32 %s, %s, 5, %s' % (V(vSLW), V(t3), V(u1)))
    A('v_bfe_u32 %s, v0, 2, 1' % V(u1))
    A('v_lshl_add_u32 %s, %s, 3, %s' % (V(u1), V(u1), V(t5)))
    A('v_bfe_u32 %s, v0, 3, 1' % V(vA))
    A('v_lshl_add_u32 %s, %s, 2, %s' % (V(u1), V(vA), V(u1)))
    A('v_lshl_add_u32 %s, %s, 2, %s' % (V(u1), V(u1), V(u0)))
    A('v_add_u32 %s, 1024, %s' % (V(vSLZ), V(u1)))
    A('s_lshl_b32 s90, s%d, 7' % sW)
    A('s_add_u32 s90, s90, %d' % MISC)
    A('v_lshl_add_u32 %s, %s, 4, s90' % (V(vRS1R), V(t3)))
    A('v_lshl_add_u32 %s, %s, 2, s90' % (V(vRSW), V(t2)))
    A('s_and_b32 s90, s%d, 3' % sTTO)
    A('s_lshl_b32 s90, s90, 7')
    A('s_add_u32 s90, s90, %d' % MISC)
    A('v_lshl_add_u32 %s, %s, 2, s90' % (V(vRS3R), V(t2)))
    A('s_mul_i32 s90, s%d, 544' % sW)
    A('s_add_u32 s90, s90, %d' % SLAB)
    A('v_add_u32 %s, s90, %s' % (V(vSLR), V(vL16)))


def sel_frag(F, u0, u1, G):
    A('v_xor_b32 %s, %s, v0' % (V(u0), V(G)))
    A('v_and_b32 %s, 1, %s' % (V(u0), V(u0)))
    A('v_cmp_eq_u32 vcc, 0, %s' % V(u0))
    A('v_mov_b32 %s, 0x3f803f80' % V(u1))
    A('v_cndmask_b32 %s, 0, %s, vcc' % (V(F), V(u1)))
    for i in range(1, 4):
        A('v_mov_b32 %s, %s' % (V(F + i), V(F)))


def fin_stats(S, Q, mean, rstd):
    return ['v_mul_f32 %s, 0x3b000000, %s' % (V(mean), V(S)),
            'v_mul_f32 %s, 0x3b000000, %s' % (V(rstd), V(Q)),
            'v_fma_f32 %s, -%s, %s, %s' % (V(rstd), V(mean), V(mean), V(rstd)),
            'v_max_f32 %s, 0, %s' % (V(rstd), V(rstd)),
            'v_add_f32 %s, 0x3727c5ac, %s' % (V(rstd), V(rstd)),
            'v_rsq_f32 %s, %s' % (V(rstd), V(rstd))]


def stats_from_partials(T, mean, rstd):
    seq = []
    for i in range(8):
        seq.append('v_add_f32 %s, %s, %s' % (V(T + i), V(T + i), V(T + 8 + i)))
    for i in range(4):
        seq.append('v_add_f32 %s, %s, %s' % (V(T + i), V(T + i), V(T + 4 + i)))
    for i in range(2):
        seq.append('v_add_f32 %s, %s, %s' % (V(T + i), V(T + i), V(T + 2 + i)))
    seq.append('v_mov_b32 %s, %s' % (V(T + 2), V(T)))
    seq.append('v_mov_b32 %s, %s' % (V(T + 3), V(T + 1)))
    seq.append('v_permlane32_swap_b32 %s, %s' % (V(T), V(T + 2)))
    seq.append('v_permlane32_swap_b32 %s, %s' % (V(T + 1), V(T + 3)))
    for i in range(2):
        seq.append('v_add_f32 %s, %s, %s' % (V(T + i), V(T + i), V(T + 2 + i)))
    return seq + fin_stats(T, T + 1, mean, rstd)


def mfrag_seq(mean, t0, t1, outs):
    seq = ['v_cvt_pk_bf16_f32 %s, -%s, -%s' % (V(t0), V(mean), V(mean)),
           'v_and_b32 %s, 0xffff0000, %s' % (V(t1), V(t0)),
           'v_add_f32 %s, %s, %s' % (V(t1), V(mean), V(t1)),
           'v_cvt_pk_bf16_f32 %s, -%s, 0' % (V(t1), V(t1))]
    for f, m in outs:
        seq.append('v_cndmask_b32 %s, 0, %s, %s' % (V(f), V(t0), sr(m, 2)))
        seq.append('v_cndmask_b32 %s, 0, %s, %s' % (V(f + 1), V(t1), sr(m, 2)))
        seq.append('v_mov_b32 %s, 0' % V(f + 2))
        seq.append('v_mov_b32 %s, 0' % V(f + 3))
    return seq


def write_crow(C, s_tile, off, t):
    A('v_cndmask_b32 %s, %s, %s, %s' % (V(t + 2), V(C), V(C + 1), sr(sB4, 2)))
    A('v_cvt_pk_bf16_f32 %s, %s, 0' % (V(t + 1), V(t + 2)))
    A('v_lshlrev_b32 %s, 16, %s' % (V(t + 3), V(t + 1)))
    A('v_sub_f32 %s, %s, %s' % (V(t + 3), V(t + 2), V(t + 3)))
    A('v_cvt_pk_bf16_f32 %s, %s, %s' % (V(t), V(t + 2), V(t + 3)))
    A('s_lshl_b32 s96, s%d, 8' % s_tile)
    A('v_add_u32 %s, s96, %s' % (V(t + 2), V(vCRR)))
    A('ds_write_b64 %s, %s offset:%d' % (V(t + 2), V(t, 2), off))


def phi(c, u, rs, lane_mode):
    q = []
    for i in range(8):
        if lane_mode:
            q.append('v_pk_fma_f32 %s, %s, %s, %s op_sel_hi:[1,0,1]' % (V(c + 2 * i, 2), V(c + 2 * i, 2), V(rs, 2), sr(sEPS, 2)))
        else:
            q.append('v_pk_fma_f32 %s, %s, %s, %s' % (V(c + 2 * i, 2), V(c + 2 * i, 2), V(rs + 2 * i, 2), sr(sEPS, 2)))
    for i in range(8):
        q.append('v_pk_mul_f32 %s, %s, %s' % (V(u + 2 * i, 2), V(c + 2 * i, 2), sr(sL2E, 2)))
    for i in range(16):
        q.append('v_exp_f32_e64 %s, %s clamp' % (V(u + i), V(u + i)))
        q.append('v_max_f32_e64 %s, s%d, %s' % (V(c + i), sEPS, V(c + i)))
    for i in range(8):
        q.append('v_pk_add_f32 %s, %s, %s' % (V(c + 2 * i, 2), V(c + 2 * i, 2), V(u + 2 * i, 2)))
    return q


def emit(x):
    if callable(x):
        x()
    elif isinstance(x, tuple):
        A(*x)
    else:
        A(x)


def weave(main, stream, n, every=16):
    for i, x in enumerate(main):
        if n > 0 and i % every == 0:
            stream.pump(1)
            n -= 1
        emit(x)
    stream.pump(n)


def p1_l1():
    for f in x_items(0) + b_items(0):
        f()
    p0_load(2, ('P0L', 2))
    Lni = A.newlabel()
    A('s_cmp_lg_u32 s%d, 0' % sW)
    A('s_cbranch_scc1 %s' % Lni)
    A('s_lshl_b32 s88, s%d, 17' % sRB)
    A('s_lshl_b32 s89, s%d, 13' % sJ)
    A('s_add_u32 s88, s88, s89')
    A('v_lshlrev_b32 %s, 7, v0' % V(vA))
    A.raw('buffer_load_dword %s, %s, %s, s88 offen %s' % (V(238), V(vA), srd(SX), 'nt' * (OPT['xnt'] >> 1)))
    A.label(Lni)
    Lni = A.newlabel()
    A('s_cmp_ge_u32 s2, 64')
    A('s_cbranch_scc1 %s' % Lni)
    A('s_mul_i32 s88, s87, 3072')
    for i in range(4):
        A('v_mov_b32 %s, -1' % V(RAW + i))
    for i in range(3):
        A.raw('buffer_store_dwordx4 %s, %s, %s, s88 offen offset:%d sc1' % (V(RAW, 4), V(vL16), srd(SWS), i * 1024))
    A.label(Lni)
    stamp('first issue')
    setup_addrs()
    stamp('setup done')
    for f in x_items(1) + b_items(1):
        f()

    def wreads(ks):
        slot = WR1 + (ks & 1) * 16
        h = int(ks >= 16)
        off = (ks - 16 * h) * 3072
        r = []
        for t in range(3):
            r.append(('ds_read_b64_tr_b16 %s, %s offset:%d' % (V(slot + 4 * t, 2), V(TN + h), off + t * 64), None))
            r.append(('ds_read_b64_tr_b16 %s, %s offset:%d' % (V(slot + 4 * t + 2, 2), V(TN + h), off + t * 64 + 768), ('W', ks, t)))
        r.append(('ds_read_b64_tr_b16 %s, %s offset:%d' % (V(slot + 12, 2), V(TN + 2 + h), off), None))
        r.append(('ds_read_b64_tr_b16 %s, %s offset:%d' % (V(slot + 14, 2), V(TN + 2 + h), off + 768), ('W', ks, 3)))
        return r

    def xreads(c):
        return [('ds_read_b128 %s, %s offset:%d' % (V(XA + 16 * (c & 1) + 4 * kk, 4), V(XRD + kk), (c % 3) * 4096), ('XA', c, kk)) for kk in range(4)]

    def sync(c):
        tags = [('X', c), ('B', c)]
        if c == OPT['xtg']:
            tags += ['P0S', 'DBG']
        A.wait(vm=tags)
        if c == OPT['xtg']:
            Lok, Lp = A.newlabel(), A.newlabel()
            A('v_cmp_eq_u32 vcc, 0, %s' % V(vB))
            A('s_cbranch_vccz %s' % Lok)
            A('s_mov_b32 s%d, 0' % sCNT)
            A.label(Lp)
            A.raw('buffer_load_dword %s, %s, %s, 0 offen sc1' % (V(vB), V(vL4), srd(SDBG)))
            spin_guard()
            A.raw('s_waitcnt vmcnt(0)')
            A('v_cmp_eq_u32 vcc, 0, %s' % V(vB))
            A('s_cbranch_vccnz %s' % Lp)
            A.label(Lok)
        barrier()
        if c == 1 or c == OPT['xtg']:
            Ln = A.newlabel()
            A('s_cmp_lg_u32 s%d, 0' % sW)
            A('s_cbranch_scc1 %s' % Ln)
            if c == 1:
                A('s_cmp_ge_u32 s2, 64')
                A('s_cbranch_scc1 %s' % Ln)
                A('s_lshl_b32 s96, s2, 2')
                A('v_mov_b32 %s, 1' % V(vA))
                A('s_mov_b64 exec, 1')
                A.raw('buffer_store_dword %s, off, %s, s96 sc1' % (V(vA), srd(SDBG)))
            else:
                A('s_lshl_b32 s96, s%d, 5' % sXCD)
                A('s_add_u32 s96, s96, s%d' % sU)
                A('s_lshl_b32 s96, s96, 2')
                A('s_add_u32 s96, s96, %d' % XT)
                A('v_mov_b32 %s, s%d' % (V(vA), sXCC))
                A('s_mov_b64 exec, 1')
                A.raw('buffer_store_dword %s, off, %s, s96 sc1' % (V(vA), srd(SWS)))
            A('s_mov_b64 exec, -1')
            A.label(Ln)
        Ln = A.newlabel()
        A('s_cmp_lg_u32 s%d, %d' % (sR4, c))
        A('s_cbranch_scc1 %s' % Ln)
        for J in range(4):
            A.raw('ds_read_b64 %s, v%d offset:%d' % (V(RAW + 2 * J, 2), 74 + J, (c % 3) * 4096))
        A.label(Ln)

    sync(0)
    stamp('g0 landed')
    for s, t in xreads(0) + wreads(0):
        A(s, t)
    vq = []
    assert OPT['p0s'] <= 4 and 1 <= OPT['p0g'] < OPT['p0s'] < OPT['xtg']
    for ks in range(32):
        c, kk = divmod(ks, 4)
        dq = []
        if kk == 0:
            assert not vq
            if c == 1:
                dq += p0_reads(2)
            if c + 2 < 8:
                vq += x_items(c + 2) + b_items(c + 2)
            if c == OPT['p0g']:
                vq += [lambda: p0_load(0, ('P0L', 0)), lambda: p0_load(1, ('P0L', 1))]
            if c == OPT['xtg'] - 2:
                vq = [lambda: A('buffer_load_dword %s, %s, %s, 0 offen sc1' % (V(vB), V(vL4), srd(SDBG)), 'DBG')] + vq
            if c == OPT['t1g']:
                vq += [lambda: A('buffer_load_dword v73, v72, %s, 0 offen %s' % (srd(SWS), 'nt' * OPT['tnt']))]
        if c == OPT['p0s'] and kk < 2:
            A.wait(vm=('P0L', kk))
            dq += p0_reads(kk)
        if kk == 2 and c == 1:
            vq = [lambda: p0_stores(2)] + vq
        if c == OPT['p0s'] and kk == 2:
            vq = [lambda: p0_stores(0), lambda: p0_stores(1)] + vq
        slot = WR1 + (ks & 1) * 16
        X = V(XA + 16 * (c & 1) + 4 * kk, 4)
        z = ks == 0
        nxt = wreads(ks + 1) if ks < 31 else []
        ms = [(lambda: mfma32(V(G16, 16), X, X, '0' if z else V(G16, 16)), ('XA', c, 3)),
              (lambda: mfma32(V(accQ, 16), V(slot, 4), X, '0' if z else V(accQ, 16)), ('W', ks, 0)),
              (lambda: mfma16(V(S4, 4), V(SEL, 4), X, '0' if z else V(S4, 4)), None),
              (lambda: mfma32(V(accK, 16), X, V(slot + 4, 4), '0' if z else V(accK, 16)), ('W', ks, 1)),
              (lambda: mfma32(V(accV, 16), X, V(slot + 8, 4), '0' if z else V(accV, 16)), ('W', ks, 2)),
              (lambda: mfma16(V(C4, 4), V(SEL, 4), V(slot + 12, 4), '0' if z else V(C4, 4)), ('W', ks, 3))]
        late = kk == 3 and c < 7
        if not late:
            dq = nxt + dq
        rate = -(-len(vq) // (3 - kk)) if kk < 3 else 9
        pops = {0: (), 1: (0,), 2: (0, 3), 3: (0, 3, 4)}.get(rate, (0, 1, 3, 4))
        for i, (m, tg) in enumerate(ms):
            A.wait(lg=tg)
            m()
            if late and i == 1:
                while vq:
                    vq.pop(0)()
                if OPT['stamps'] > 1:
                    stamp(' pre-sync %d' % (c + 1))
                sync(c + 1)
                if OPT['stamps'] > 1:
                    stamp(' sync %d' % (c + 1))
                dq = xreads(c + 1) + nxt + dq
            n = (2, 3, 1, 3, 3, 9)[i]
            for s_, t_ in dq[:n]:
                A(s_, t_)
            dq = dq[n:]
            if i in pops and vq:
                vq.pop(0)()
        assert not dq
    while vq:
        vq.pop(0)()
    stamp('p1 loop done')
    barrier()
    t = WR1
    write_crow(C4, sCT, CR1, t)
    A('v_and_b32 %s, 31, v0' % V(t + 4))
    A('v_lshl_add_u32 %s, %s, 6, s%d' % (V(t + 5), V(t + 4), sSLABW))
    A('s_mov_b32 exec_lo, 0x0f0f0f0f')
    A('s_mov_b32 exec_hi, 0xf0f0f0f0')
    for i in range(4):
        A('ds_write_b128 %s, %s offset:%d' % (V(t + 5), V(G16 + 4 * i, 4), 16 * i))
    A('s_mov_b64 exec, -1')
    A('v_lshrrev_b32 %s, 3, %s' % (V(t + 6), V(t + 4)))
    A('v_lshl_add_u32 %s, %s, 4, %s' % (V(t + 5), V(t + 6), V(t + 5)))
    A('v_and_b32 %s, 3, v0' % V(t + 6))
    A('v_lshl_add_u32 %s, %s, 2, %s' % (V(t + 5), V(t + 6), V(t + 5)))
    A('ds_read_b32 %s, %s' % (V(t + 7), V(t + 5)), 'GD')
    A('v_cndmask_b32 %s, %s, %s, %s' % (V(t + 6), V(S4), V(S4 + 1), sr(sB4, 2)))
    A.wait(lg='GD')
    barrier()
    CF = 128
    for tt in range(3):
        A('ds_read_b64 %s, %s offset:%d' % (V(CF + 4 * tt, 2), V(vCRR), CR1 + tt * 256), 'CF')
    for s in fin_stats(t + 6, t + 7, MEAN1, RSTD1):
        A(s)
    A('ds_write_b32 %s, %s offset:%d' % (V(vRSW), V(RSTD1), RS1))
    for J in range(4):
        A('ds_read_b128 %s, %s offset:%d' % (V(RSR + 4 * J, 4), V(vRS1R), RS1 + J * 32), 'RS')
    for s in mfrag_seq(MEAN1, t, t + 1, [(MF1, sMLO)]):
        A(s)
    for tt in range(3):
        A('v_mov_b32 %s, 0' % V(CF + 4 * tt + 2))
        A('v_mov_b32 %s, 0' % V(CF + 4 * tt + 3))
    A.wait(lg='CF')
    M = V(MF1, 4)
    mfma32(V(accK, 16), M, V(CF + 4, 4), V(accK, 16))
    mfma32(V(accV, 16), M, V(CF + 8, 4), V(accV, 16))
    mfma32(V(accQ, 16), V(CF, 4), M, V(accQ, 16))


RSR = 224


KU = 128
kphi_left = []


def mloop(layer, p3, BS):
    ACC, ACT = 80, 128
    CS, SL = 136, 140
    WR, NW, LOOK = 144, 7, 5
    XR, NX = 172, 13
    STT = 224
    MF, MFA, MFB = 252, 240, 244
    MEAN, RSTD = 248, 250
    cs = p3 and layer == 0
    xbase = aX1F[layer] if p3 else XF
    sbase = aST1[layer] if p3 else ST2
    crow = CR3 if p3 else CR1
    barrier()
    BS.barriered()
    if cs:
        A('v_lshrrev_b32 %s, 4, v0' % V(vB))
        sel_frag(SL, STT, STT + 1, vB)
        A('s_cmp_eq_u32 s%d, 3' % sW)
        A('s_cselect_b32 s78, 0, 3072')
        A('s_mov_b32 s79, 3072')
        A('s_cselect_b32 s79, 1024, s79')
        A('s_lshl_b32 s96, s%d, 10' % sW)
        Ln = A.newlabel()
        A('s_cmp_lg_u32 s%d, 3' % sW)
        A('s_cbranch_scc1 %s' % Ln)
        A('s_mov_b32 s96, %d' % BT)
        for i in range(4):
            A('v_mov_b32 %s, 0x3f003f00' % V(SL + i))
        A.label(Ln)
        A('v_add_u32 %s, s96, %s' % (V(vB), V(vL16)))

    D = 0 if cs else OPT['skew']
    tord = (0, 1, 2) if p3 else (1, 2, 0)
    MS = 24
    mstep = [('M', 32, t) for t in tord] + ([('T', 16)] if p3 else [])
    ops = []
    for ks in range(32 - D):
        if ks == MS and not cs:
            ops += mstep
        for i, t in enumerate(tord):
            ops.append(('M', ks, t))
            if p3 and ks % 2 == 0 and ks >= 2:
                if i == 0:
                    ops.append(('S', ks // 2 - 1))
                if i == 1:
                    ops.append(('T', ks // 2 - 1))
            if cs and i == 2:
                ops.append(('C', ks))
    for i, t in enumerate(tord):
        for ks in range(32 - D, 32):
            ops.append(('M', ks, t))
            if p3 and i == 0 and ks == 32 - D:
                ops.append(('S', ks // 2 - 1))
            if p3 and i == 0 and ks == 33 - D:
                ops.append(('T', ks // 2 - 1))
            if p3 and i == 2 and ks % 2 == 1:
                ops.append(('S', ks // 2))
            if p3 and i == 2 and ks % 2 == 0 and ks > 32 - D:
                ops.append(('T', ks // 2 - 1))
        if D:
            ops.append(('E', t))
    if p3:
        if not D:
            ops.append(('S', 15))
        ops.append(('T', 15))
    if cs:
        ops.append(('B',))
        ops += mstep
    rops = [o for o in ops if o[0] in 'MTC']
    slot = {o: WR + 4 * (i % NW) for i, o in enumerate(rops)}
    lastuse = {}
    for i, o in enumerate(ops):
        if o[0] == 'M' and o[1] < 32:
            lastuse[o[1]] = i
        if o[0] == 'T' and o[1] < 16:
            lastuse[2 * o[1]] = lastuse[2 * o[1] + 1] = i
    rp = [0]
    unblocked = [not cs]

    def advance(upto):
        while rp[0] < min(upto, len(rops)):
            o = rops[rp[0]]
            r = slot[o]
            if o in mstep:
                if not unblocked[0]:
                    return
                if o[0] == 'M':
                    A('ds_read_b64 %s, %s offset:%d' % (V(r, 2), V(vCRR), crow + o[2] * 256), o)
                else:
                    A('ds_read_b64 %s, %s offset:%d' % (V(r, 2), V(vCRT), crow + 768), o)
            elif o[0] == 'M':
                BS.sync(o[1] // 4)
                h = o[1] >= 16
                A('ds_read_b128 %s, %s offset:%d' % (V(r, 4), V(vL16H if h else vL16), (o[1] - 16 * h) * 3072 + o[2] * 1024), o)
            elif o[0] == 'T':
                A('ds_read_b128 %s, %s offset:%d' % (V(r, 4), V(vL16H), 49152 + o[1] * 1024), o)
            else:
                A('ds_read_b128 %s, %s' % (V(r, 4), V(vB)), o)
                A('v_add_u32 %s, s%d, %s' % (V(vB), 78 + (o[1] & 1), V(vB)))
            rp[0] += 1

    early = BS.synced >= BS.upto(0)
    if early:
        advance(LOOK)
    A('s_lshl_b32 s72, s%d, 15' % sTW)
    A('s_add_u32 s72, s72, %d' % xbase)
    A('s_lshl_b32 s73, s%d, 12' % sTW)
    A('s_add_u32 s73, s73, %d' % sbase)
    if p3:
        A('s_mul_i32 s74, s%d, 112' % sTW)
        A('s_mul_i32 s75, s%d, 7' % sJ)
        A('s_add_u32 s74, s74, s75')
        A('s_lshl_b32 s74, s74, 10')
        A('s_add_u32 s74, s74, %d' % aHF[layer])
        A('s_add_u32 s75, s74, 4096')
    poll(vPB, 4 * layer + 2 if p3 else 4)
    stamp('p3 poll ok' if p3 else 'p1b poll ok')
    xi = [0]

    def xload():
        ks = xi[0]
        xi[0] += 1
        if ks % 4 == 0 and ks:
            A('s_add_u32 s72, s72, 4096')
        A('buffer_load_dwordx4 %s, %s, %s, s72 offen offset:%d sc1' % (V(XR + 4 * (ks % NX), 4), V(vL16), srd(SWS), (ks % 4) * 1024), ('X', ks))

    if not early:
        BS.force(0)
    for _ in range(OPT['nb']):
        xload()
    if not early:
        advance(LOOK)

    def epi(t):
        q = []
        for p in range(2):
            r = STT + 8 * (t & 1) + 4 * p
            a = ACC + 16 * t + 8 * p
            for i in range(4):
                q.append('v_cvt_pk_bf16_f32 %s, %s, %s' % (V(r + i), V(a + 2 * i), V(a + 2 * i + 1)))
            for i in range(4):
                q.append('v_pk_max_i16 %s, %s, 0' % (V(r + i), V(r + i)))
            k = 2 * t + p
            q.append('buffer_store_dwordx4 %s, %s, %s, s%d offen offset:%d' % (V(r, 4), V(vL16), srd(SWS), 74 + k // 4, (k % 4) * 1024))
        return q

    side, late = [], []
    nr = 0
    started = set()
    wleft = [OPT['k_p3'] if cs else 0]
    stq = [('buffer_load_dwordx4 %s, %s, %s, s73 offen offset:%d sc1' % (V(STT + 4 * i, 4), V(vSTL), srd(SWS), 512 * i), 'ST') for i in range(4)]
    hold = 0
    for i, o in enumerate(ops):
        if o[0] == 'B':
            write_crow(CS, sW, CR3, STT + 8)
            A.wait(lg='all')
            barrier()
            unblocked[0] = True
            advance(99999)
            continue
        if o[0] == 'E':
            if p3:
                late += epi(o[1])
            elif o[1] == 1:
                late += [lambda: A.wait(lg='RS')] + phi(accK, KU, RSR, False)
            hold = 2
            continue
        if o[0] == 'S':
            xa, xb = XR + 4 * ((2 * o[1]) % NX), XR + 4 * ((2 * o[1] + 1) % NX)
            for k in range(4):
                A('v_permlane16_swap_b32 %s, %s' % (V(xa + k), V(xb + k)))
            continue
        nr += 1
        W = V(slot[o], 4)
        if o[0] == 'T':
            A.wait(lg=o)
            xs = (XR + 4 * ((2 * o[1]) % NX), XR + 4 * ((2 * o[1] + 1) % NX)) if o[1] < 16 else (MFA, MFB)
            for u, xx in enumerate(xs):
                mfma16(V(ACT + 4 * u, 4), W, V(xx, 4), '0' if o[1] == 0 else V(ACT + 4 * u, 4))
            advance(nr + LOOK)
            continue
        if o[0] == 'C':
            A.wait(lg=o)
            mfma16(V(CS, 4), V(SL, 4), W, '0' if o[1] == 0 else V(CS, 4))
            advance(nr + LOOK)
            continue
        _, ks, t = o
        first = ks not in started
        started.add(ks)
        if first and ks == 12:
            assert not stq
            A.wait(vm='ST')
            outs = [(MF, sMLO)] + ([(MFA, sM0), (MFB, sM1)] if p3 else [])
            side = stats_from_partials(STT, MEAN, RSTD) + mfrag_seq(MEAN, STT + 4, STT + 5, outs)
            side.append('ds_write_b32 %s, %s offset:%d' % (V(vRSW), V(RSTD), RS3 if p3 else RS1))
            if not p3:
                for J in range(4):
                    side.append(('ds_read_b128 %s, %s offset:%d' % (V(RSR + 4 * J, 4), V(vRS1R), RS1 + J * 32), 'RS'))
        if ks == 32:
            assert not side
        X = V(XR + 4 * (ks % NX), 4) if ks < 32 else V(MF, 4)
        A.wait(vm=('X', ks), lg=o)
        acc = V(ACC + 16 * t, 16)
        c = '0' if ks == 0 else acc
        if p3 or t == 0:
            mfma32(acc, W, X, c)
        else:
            mfma32(acc, X, W, c)
        advance(nr + LOOK)
        canx = xi[0] < 32 and (xi[0] < NX or lastuse[xi[0] - NX] <= i)
        if first and BS.left():
            BS.pump(1)
        elif stq and ks >= 3 and t == tord[2]:
            emit(stq.pop(0))
        elif canx and not first:
            xload()
        elif BS.left() == 0 and wleft[0] and ks < 26:
            wleft[0] -= 1
            WS_.pump(1)
        for _ in range(2):
            if side:
                emit(side.pop(0))
        if hold:
            hold -= 1
        if not hold:
            for _ in range(4):
                if late:
                    emit(late.pop(0))
    assert not side and not stq and rp[0] == len(rops) and xi[0] == 32
    stamp('p3 loop done' if p3 else 'p1b loop done')
    if not p3:
        if not D:
            late = [lambda: A.wait(lg='RS')] + phi(accK, KU, RSR, False)
        kphi_left[:] = late
        return
    if not D:
        late = epi(0) + epi(1) + epi(2)
    for x in late:
        emit(x)
    for u in range(2):
        r = WR + 2 * u
        a = ACT + 4 * u
        A('v_cvt_pk_bf16_f32 %s, %s, %s' % (V(r), V(a), V(a + 1)))
        A('v_cvt_pk_bf16_f32 %s, %s, %s' % (V(r + 1), V(a + 2), V(a + 3)))
        for i in range(2):
            A('v_pk_max_i16 %s, %s, 0' % (V(r + i), V(r + i)))
        A('buffer_store_dwordx2 %s, %s, %s, s75 offen offset:%d' % (V(r, 2), V(vHS1), srd(SWS), 2048 + u * 256), 'PUB')
    if layer == 0:
        WS_.pump(OPT['k_h'])
    publish(sMYFL, 4 * layer + 3)
    stamp('h published')


def p1_tail(layer):
    U, PKF, VF, KVD, Z, SU = KU, 152, 160, 168, 184, 188
    if layer == 0:
        kphi_left[:] = [lambda: A.wait(lg='RS')] + phi(accK, 144 + 60, RSR, False)
    for x in kphi_left:
        emit(x)
    for i in range(8):
        A('v_cvt_pk_bf16_f32 %s, %s, %s' % (V(PKF + i), V(accK + 2 * i), V(accK + 2 * i + 1)))
    for h in range(2):
        for i in range(4 * h, 4 * h + 4):
            A('v_pk_mul_f32 %s, %s, %s' % (V(accV + 2 * i, 2), V(accV + 2 * i, 2), V(RSR + 2 * i, 2)))
        for i in range(4 * h, 4 * h + 4):
            A('v_cvt_pk_bf16_f32 %s, %s, %s' % (V(VF + i), V(accV + 2 * i), V(accV + 2 * i + 1)))
        for i in range(2 * h, 2 * h + 2):
            A('v_pk_add_f32 %s, %s, %s' % (V(accK + 2 * i, 2), V(accK + 2 * i, 2), V(accK + 8 + 2 * i, 2)))
        mfma32(V(KVD, 16), V(PKF + 4 * h, 4), V(VF + 4 * h, 4), V(KVD, 16) if h else '0')
    for i in range(2):
        A('v_pk_add_f32 %s, %s, %s' % (V(accK + 2 * i, 2), V(accK + 2 * i, 2), V(accK + 4 + 2 * i, 2)))
    A('v_pk_add_f32 %s, %s, %s' % (V(accK, 2), V(accK, 2), V(accK + 2, 2)))
    A('v_add_f32 %s, %s, %s' % (V(Z), V(accK), V(accK + 1)))
    A('v_mov_b32 %s, %s' % (V(Z + 1), V(Z)))
    A('s_add_u32 s72, s%d, %d' % (sKVPO, KVP + layer * 32 * 16 * KVP_RS))
    qphi = phi(accQ, U, RSTD1, True)
    A(qphi.pop(0))
    A('v_permlane32_swap_b32 %s, %s' % (V(Z), V(Z + 1)))
    A('v_add_f32 %s, %s, %s' % (V(Z), V(Z), V(Z + 1)))
    A('ds_write_b32 %s, %s' % (V(vSLZ), V(Z)))
    for _ in range(2):
        A(qphi.pop(0))
    for h in range(2):
        for i in range(4 * h, 4 * h + 4):
            A('v_cndmask_b32 %s, %s, %s, %s' % (V(KVD + i), V(KVD + i), V(KVD + 8 + i), sr(sB4, 2)))
        A('ds_write_b128 %s, %s offset:%d' % (V(vSLW), V(KVD + 4 * h, 4), 16 * h))
    for _ in range(9):
        A(qphi.pop(0))
    A.wait(lg='all')
    barrier()
    for i in range(4):
        A('ds_read_b128 %s, %s offset:%d' % (V(SU + 4 * i, 4), V(vSLR), i * SLAB_ST))
    for _ in range(14):
        A(qphi.pop(0))
    A.wait(lg='all')
    for i in range(2):
        A('v_pk_add_f32 %s, %s, %s' % (V(SU + 2 * i, 2), V(SU + 2 * i, 2), V(SU + 4 + 2 * i, 2)))
        A('v_pk_add_f32 %s, %s, %s' % (V(SU + 8 + 2 * i, 2), V(SU + 8 + 2 * i, 2), V(SU + 12 + 2 * i, 2)))
    for i in range(2):
        A('v_pk_add_f32 %s, %s, %s' % (V(SU + 2 * i, 2), V(SU + 2 * i, 2), V(SU + 8 + 2 * i, 2)))
    for i in range(2):
        A('v_cvt_pk_bf16_f32 %s, %s, %s' % (V(SU + 4 + i), V(SU + 2 * i), V(SU + 2 * i + 1)))
    A('s_mov_b32 exec_hi, 3')
    for i in range(2):
        A('v_min_u32 %s, -2, %s' % (V(SU + 4 + i), V(SU + 4 + i)))
    A('buffer_store_dwordx2 %s, %s, %s, s72 offen sc1' % (V(SU + 4, 2), V(vL8), srd(SWS)))
    A('s_mov_b64 exec, -1')
    stamp('kv partial stored')
    XB = 220
    if layer == 0:
        A('s_mov_b32 s73, %d' % XT)
        A('buffer_load_dwordx4 %s, %s, %s, s73 offen sc1' % (V(XB, 4), V(vL16), srd(SWS)), 'XT')
    for i in range(8):
        qphi.append('v_cvt_pk_bf16_f32 %s, %s, %s' % (V(PKF + i), V(accQ + 2 * i), V(accQ + 2 * i + 1)))
    weave(qphi, B3b, OPT['b3_c'] if layer else 0, 7)
    A('s_mul_i32 s72, s%d, 56' % sTW)
    A('s_add_u32 s72, s72, s%d' % sJ)
    A('s_lshl_b32 s72, s72, 11')
    A('s_add_u32 s72, s72, %d' % aPQ[layer])
    A('buffer_store_dwordx4 %s, %s, %s, s72 offen' % (V(PKF, 4), V(vL16), srd(SWS)))
    A('buffer_store_dwordx4 %s, %s, %s, s72 offen offset:1024' % (V(PKF + 4, 4), V(vL16), srd(SWS)), 'PUB')
    if layer == 0:
        for i in range(8):
            A('v_lshlrev_b32 %s, 16, %s' % (V(vRES + 2 * i), V(RAW + i)))
            A('v_and_b32 %s, 0xffff0000, %s' % (V(vRES + 2 * i + 1), V(RAW + i)))
        A.wait(vm='XT')
        A('s_mov_b32 s%d, 0' % sCNT)
        Lc, Lok = A.newlabel(), A.newlabel()
        A.label(Lc)
        A('v_max_u32 %s, %s, %s' % (V(vA), V(XB), V(XB + 1)))
        A('v_max3_u32 %s, %s, %s, %s' % (V(vA), V(XB + 2), V(XB + 3), V(vA)))
        A('v_cmp_eq_u32 vcc, -1, %s' % V(vA))
        A('s_cbranch_vccz %s' % Lok)
        A.raw('buffer_load_dwordx4 %s, %s, %s, s73 offen sc1' % (V(XB, 4), V(vL16), srd(SWS)))
        spin_guard()
        A.raw('s_waitcnt vmcnt(0)')
        A('s_branch %s' % Lc)
        A.label(Lok)
        A('v_min_u32 %s, %s, %s' % (V(vB), V(XB), V(XB + 1)))
        A('v_min3_u32 %s, %s, %s, %s' % (V(vB), V(XB + 2), V(XB + 3), V(vB)))
        A('v_cmp_ne_u32 vcc, s%d, %s' % (sXCC, V(vA)))
        A('v_cmp_ne_u32 s[74:75], s%d, %s' % (sXCC, V(vB)))
        A('s_or_b64 s[74:75], s[74:75], vcc')
        A('s_lshl_b32 s76, s%d, 3' % sXCD)
        A('s_lshr_b64 s[74:75], s[74:75], s76')
        A('s_and_b32 s74, s74, 0xff')
        A('s_cselect_b32 s%d, 1, s%d' % (sSLOW, sSLOW))
        stamp('xt ok')
    A('s_mul_i32 s72, s%d, %d' % (sU, 16 * KVP_RS))
    A('s_mul_i32 s79, s%d, 136' % sW)
    A('s_add_u32 s72, s72, s79')
    A('s_add_u32 s72, s72, %d' % (KVP + layer * 32 * 16 * KVP_RS))
    for i in range(1, 3):
        A('s_add_u32 s%d, s72, %d' % (72 + i, i * 6 * KVP_RS))
    A('s_lshl_b32 s78, s%d, 5' % sXCD)
    A('s_add_u32 s78, s78, s%d' % sU)
    A('s_lshl_b32 s78, s78, 10')
    A('s_add_u32 s78, s78, s79')
    A('s_add_u32 s78, s78, %d' % aKVF[layer])
    A('v_mov_b32 v100, 0x3f80')
    A('v_mov_b32 v101, 1.0')
    publish(sMYFL, 4 * layer + 1)
    if layer == 0:
        WS_.pump(OPT['k_pq'])
    else:
        B3b.pump(OPT['b3_pq'])
    stamp('pq published')


def reducer(layer):
    R = 80
    A('s_mov_b32 s%d, 0' % sCNT)
    A('s_mov_b32 exec_hi, 3')
    Lp = A.label()
    for i in range(16):
        A('buffer_load_dword %s, %s, %s, s%d offen offset:%d sc1' % (V(R + i), V(vL4), srd(SWS), 72 + i // 6, (i % 6) * KVP_RS), ('R', i))
    spin_guard()
    for i in range(0, 16, 2):
        A.wait(vm=('R', i + 1))
        if i == 0:
            A('v_max_u32 %s, %s, %s' % (V(vA), V(R), V(R + 1)))
        else:
            A('v_max3_u32 %s, %s, %s, %s' % (V(vA), V(R + i), V(R + i + 1), V(vA)))
        for k in range(2):
            for h in range(2):
                d = 96 + 2 * k + h
                A('v_dot2_f32_bf16 %s, %s, v%d, %s' % (V(d), V(R + i + k), 100 + h, '0' if i == 0 else V(d)))
    A('v_cmp_eq_u32 vcc, -1, %s' % V(vA))
    A('s_cbranch_vccnz %s' % Lp)
    A('v_pk_add_f32 v[96:97], v[96:97], v[98:99]')
    A('v_cvt_pk_bf16_f32 v96, v96, v97')
    A('buffer_store_dword v96, %s, %s, s78 offen' % (V(vL4), srd(SWS)), 'PUB')
    A('s_mov_b64 exec, -1')
    stamp('kv reduced')


def ksplit_round1(acc1):
    q = []
    for k in range(4):
        q.append('ds_write_b128 %s, %s offset:%d' % (V(vSC2), V(acc1 + 4 * k, 4), k * 1024))
    for k in range(4):
        q.append('ds_write_b128 %s, %s offset:%d' % (V(vSC3), V(acc1 + 16 + 4 * k, 4), 4096 + k * 1024))
    return q


def ksplit_recv1(inc, scale):
    A.wait(lg='all')
    barrier()
    for k in range(8):
        A('ds_read_b128 %s, %s offset:%d' % (V(inc + 4 * k, 4), V(vSC0), k * 1024), 'INC')
    if scale is not None:
        A('ds_read_b32 %s, %s offset:%d' % (V(scale), V(vRS3R), RS3), 'INC')
    q = [lambda: A.wait(lg='INC')]
    for i in range(32):
        q.append(addres(i % 16, inc + i, scale, 1))
    return q


def addres(r, x, scale, n):
    if n == 1:
        if scale is None:
            return 'v_add_f32 %s, %s, %s' % (V(vRES + r), V(vRES + r), V(x))
        return 'v_fmac_f32 %s, %s, %s' % (V(vRES + r), V(x), V(scale))
    if scale is None:
        return 'v_pk_add_f32 %s, %s, %s' % (V(vRES + r, 2), V(vRES + r, 2), V(x, 2))
    return 'v_pk_fma_f32 %s, %s, %s, %s op_sel_hi:[1,0,1]' % (V(vRES + r, 2), V(x, 2), V(scale, 2), V(vRES + r, 2))


def ksplit_send2(acc0, inc):
    q = ['ds_write_b128 %s, %s offset:%d' % (V(vSC0), V(acc0 + 16 + 4 * k, 4), k * 1024) for k in range(4)]
    q += [lambda: A.wait(lg='all'), barrier]
    q += [('ds_read_b128 %s, %s offset:%d' % (V(inc + 4 * i, 4), V(vSC1), i * 1024), ('I2', i)) for i in range(4)]
    return q


def finish_tile(acc0, inc, P, scale):
    for i in range(8):
        A(addres(2 * i, acc0 + 2 * i, scale, 2))
    for i in range(4):
        A.wait(lg=('I2', i))
        for k in range(2):
            A(addres(4 * i + 2 * k, inc + 4 * i + 2 * k, scale, 2))
        for k in range(2):
            r = 4 * i + 2 * k
            A('v_cvt_pk_bf16_f32 %s, %s, %s' % (V(P + r // 2), V(vRES + r), V(vRES + r + 1)))


def store_x(P, T):
    A('buffer_store_dwordx4 %s, %s, %s, s80 offen' % (V(P, 4), V(vL16), srd(SWS)))
    A('buffer_store_dwordx4 %s, %s, %s, s80 offen offset:1024' % (V(P + 4, 4), V(vL16), srd(SWS)))
    for i in range(8):
        for k, b in ((0, T + 4), (2, P + i)):
            A('v_dot2_f32_bf16 %s, %s, %s, %s' % (V(T + k), V(P + i), V(b), V(T + k) if i else '0'))
    A('v_permlane32_swap_b32 %s, %s' % (V(T), V(T + 2)))
    A('v_add_f32 %s, %s, %s' % (V(T), V(T), V(T + 2)))
    A('buffer_store_dword %s, %s, %s, s81 offen' % (V(T), V(vSTS), srd(SWS)), 'PUB')


def p2(layer):
    PQ1, PQ0, KF, ACC1, ND, O = 80, 112, 144, 176, 208, 240
    ACC0 = PQ1
    A('s_lshl_b32 s72, s%d, 5' % sXCD)
    A('s_lshl_b32 s73, s%d, 3' % sW)
    A('s_add_u32 s72, s72, s73')
    A('s_lshl_b32 s72, s72, 10')
    A('s_add_u32 s72, s72, %d' % aKVF[layer])
    A('s_add_u32 s73, s72, 4096')
    A('s_mul_i32 s74, s%d, 114688' % sTTO)
    A('s_xor_b32 s76, s%d, 1' % sTTO)
    A('s_mul_i32 s76, s76, 114688')
    A('s_lshl_b32 s75, s%d, 13' % sW)
    A('s_add_u32 s75, s75, %d' % aPQ[layer])
    A('s_add_u32 s74, s74, s75')
    A('s_add_u32 s76, s76, s75')
    A('s_add_u32 s75, s74, 4096')
    A('s_add_u32 s77, s76, 4096')
    A('s_add_u32 s80, s%d, %d' % (sXST, aX1F[layer]))
    A('s_add_u32 s81, s%d, %d' % (sSTS, aST1[layer]))
    A('v_mov_b32 %s, 0x3f803f80' % V(252))
    A('s_lshl_b32 s79, s%d, 7' % sW)
    A('s_add_u32 s79, s79, 512')
    A('v_and_b32 %s, 0x7c, %s' % (V(vPK), V(vL4)))
    A('v_add_u32 %s, s79, %s' % (V(vPK), V(vPK)))
    if layer == 0 or OPT['t2'] > 1:
        A('s_mul_i32 s78, s%d, 112' % sTW)
        A('s_mul_i32 s79, s%d, 7' % sJ)
        A('s_add_u32 s78, s78, s79')
        A('s_lshl_b32 s78, s78, 10')
        A('s_add_u32 s78, s78, %d' % aHF[0])
        A('v_min_u32 %s, 55, v0' % V(vFREE1))
        A('v_lshlrev_b32 %s, 7, %s' % (V(vFREE1), V(vFREE1)))
    publish(sMYKFL, 4 * layer + 1)
    stamp('kvf published')
    poll(vPC, 4 * layer + 1)
    lds = []
    for hh in range(8):
        lds.append(('buffer_load_dwordx4 %s, %s, %s, s%d offen offset:%d sc1' % (V(PQ1 + 4 * hh, 4), V(vL16), srd(SWS), 76 + hh // 4, (hh % 4) * 1024), ('P', hh)))
    for hh in range(8):
        lds.append(('buffer_load_dwordx4 %s, %s, %s, s%d offen offset:%d sc1' % (V(PQ0 + 4 * hh, 4), V(vL16), srd(SWS), 74 + hh // 4, (hh % 4) * 1024), ('P', 8 + hh)))
    for _ in range(8):
        A(*lds.pop(0))
    if layer == 0:
        WS_.force(0)
        WS_.pump(OPT['k_kf'])
        B3a.pump(OPT['a_kf'])
    else:
        B3b.pump(OPT['b3_kf'])
    poll(vPK, 4 * layer + 1)
    stamp('p2 poll ok')
    for hh in range(8):
        A('buffer_load_dwordx4 %s, %s, %s, s%d offen offset:%d sc1' % (V(KF + 4 * hh, 4), V(vKVL), srd(SWS), 72 + hh // 4, (hh % 4) * 1024), ('K', hh))
    if OPT['t2'] > layer:
        lds.append(('buffer_load_dword %s, %s, %s, s78 offen %s' % (V(vFREE2), V(vFREE1), srd(SWS), 'nt' * OPT['tnt']), None))
    if layer == 0:
        lds += [lambda: B3a.pump(1)] * OPT['a_p2'] + [lambda: WS_.pump(1)] * OPT['k_p2']
    else:
        lds += [lambda: B3b.pump(1)] * OPT['b3_p2']

    def more():
        if lds:
            emit(lds.pop(0))

    def nd(i):
        A.wait(vm=[('P', i), ('K', i & 7)])
        pq = (PQ1 if i < 8 else PQ0) + 4 * (i & 7)
        mfma32(V(ND + 16 * (i & 1), 16), V(KF + 4 * (i & 7), 4), V(pq, 4), '0')

    def valu(i):
        n = ND + 16 * (i & 1)
        o = O + 4 * (i & 1)
        s = ['v_add_f32 %s, s%d, %s' % (V(vA), sEPS, V(n + 8)),
             'v_rcp_f32 %s, %s' % (V(vA), V(vA))]
        for k in range(4):
            s.append('v_mul_f32 %s, %s, %s' % (V(n + 2 * k), V(n + 2 * k), V(vA)))
            s.append('v_mul_f32 %s, %s, %s' % (V(n + 2 * k + 1), V(n + 2 * k + 1), V(vA)))
        for k in range(4):
            s.append('v_cvt_pk_bf16_f32 %s, %s, %s' % (V(o + k), V(n + 2 * k), V(n + 2 * k + 1)))
        return s

    def gemm(i, ct):
        acc = (ACC1 if i < 8 else ACC0) + 16 * ct
        mfma32(V(acc, 16), wo_frag(i & 7, ct), V(O + 4 * (i & 1), 4), '0' if (i & 7) == 0 else V(acc, 16))

    more()
    more()
    nd(0)
    extra = []
    for i in range(17):
        s = valu(i) if i < 16 else []
        if i == 10:
            extra = ksplit_round1(ACC1)
        if i + 1 < 16:
            nd(i + 1)
        for x in s[:2]:
            A(x)
        more()
        for x in s[2:5]:
            A(x)
        if i >= 1:
            gemm(i - 1, 1)
        for x in s[5:10] + extra[:1]:
            A(x)
        if i >= 1:
            gemm(i - 1, 0)
        more()
        for x in s[10:] + extra[1:3]:
            A(x)
        extra = extra[3:]
        if i == 14:
            post = ksplit_recv1(ACC1, None)
    while lds:
        more()
    stamp('p2 loop done')
    emit(post[0])
    for i in range(8):
        A(addres(2 * i, ACC1 + 2 * i, None, 2))
    q = ksplit_send2(ACC0, ACC1)
    for x in q[:4]:
        emit(x)
    for i in range(8):
        A(addres(2 * i, ACC1 + 16 + 2 * i, None, 2))
    for x in q[4:]:
        emit(x)
    P = 112
    finish_tile(ACC0, ACC1, P, None)
    store_x(P, 248)
    if layer == 0:
        B3a.pump(OPT['a_x1'])
        WS_.pump(OPT['k_x1'])
    else:
        B3b.pump(OPT['b3_x1'])
    publish(sMYFL, 4 * layer + 2)
    stamp('x1 published')


def p4(layer):
    ACC1, ACC0, HR = 80, 112, 144
    NH = 24
    RSD = 246
    if layer == 0:
        barrier()
        B1b.pump(OPT['b1_h'])
    A('s_mul_i32 s72, s%d, 112' % sTTO)
    A('s_xor_b32 s73, s%d, 1' % sTTO)
    A('s_mul_i32 s73, s73, 112')
    A('s_mul_i32 s74, s%d, 28' % sW)
    A('s_add_u32 s72, s72, s74')
    A('s_add_u32 s73, s73, s74')
    A('s_lshl_b32 s72, s72, 10')
    A('s_lshl_b32 s73, s73, 10')
    A('s_add_u32 s72, s72, %d' % aHF[layer])
    A('s_add_u32 s73, s73, %d' % aHF[layer])
    A('s_add_u32 s80, s%d, %d' % (sXST, XF))
    A('s_add_u32 s81, s%d, %d' % (sSTS, ST2))
    A('v_mov_b32 %s, 0x3f803f80' % V(252))
    poll(vPC, 4 * layer + 3)
    stamp('p4 poll ok')
    hi = [0]
    wrem = WS_.left() if layer == 0 else 0

    def hload():
        n = hi[0]
        hi[0] += 1
        tp, ks = divmod(n, 28)
        if layer == 0 and tp == 0:
            want = min(72, 72 - wrem + -(-wrem * (ks + 1) // 26))
            WS_.pump(max(0, want - WS_.issued))
            WS_.force(1 + ks)
        sb = 73 if tp == 0 else 72
        if ks % 4 == 0 and ks:
            A('s_add_u32 s%d, s%d, 4096' % (sb, sb))
        A('buffer_load_dwordx4 %s, %s, %s, s%d offen offset:%d sc1' % (V(HR + 4 * (n % NH), 4), V(vL16), srd(SWS), sb, (ks % 4) * 1024), ('H', n))

    for n in range(OPT['nb'] + 1):
        hload()
    b1left = [OPT['b1_p4']]
    D = 6
    ops = []
    for n in range(56 - D):
        ops += [(n, 1), (n, 0)]
    ops += [(n, 1) for n in range(56 - D, 56)] + [(n, 0) for n in range(56 - D, 56)]
    extra = []
    for i, (n, ct) in enumerate(ops):
        tp, ks = divmod(n, 28)
        acc = (ACC1 if tp == 0 else ACC0) + 16 * ct
        A.wait(vm=('H', n))
        mfma32(V(acc, 16), w2_frag(ks, ct), V(HR + 4 * (n % NH), 4), '0' if ks == 0 else V(acc, 16))
        if hi[0] < 56:
            if hi[0] - NH < n and (ct == 1 or hi[0] - n < OPT['lead4']):
                hload()
        elif layer == 0 and b1left[0] > 0 and i % 2 == 0:
            b1left[0] -= 1
            B1b.pump(1)
        if i == 60:
            extra = ksplit_round1(ACC1)
        if i == 76:
            assert not extra
            extra = ksplit_recv1(ACC1, RSD)
            continue
        if i == 112 - D + 1:
            assert not extra
            extra = ksplit_send2(ACC0, ACC1)
        k = 1 if i < 76 else (2 if i >= 80 else 0)
        for x in extra[:k]:
            emit(x)
        extra = extra[k:]
    for x in extra:
        emit(x)
    stamp('p4 loop done')
    P = 144
    finish_tile(ACC0, ACC1, P, RSD)
    if layer == 0:
        store_x(P, 248)
        B1b.pump(OPT['b1_x2'])
        publish(sMYFL, 4)
        stamp('x2 published')
    else:
        for a, b in ((0, 2), (1, 3), (4, 6), (5, 7)):
            A('v_permlane32_swap_b32 %s, %s' % (V(P + a), V(P + b)))
        for J in range(2):
            A('buffer_store_dwordx4 %s, %s, %s, s%d offen offset:%d' % (V(P + 4 * J, 4), V(vOUT), srd(SOUT), sOUTO, J * 32))


def main():
    out = sys.argv[1]
    prologue()
    seq = [p1_l1, lambda: p1_tail(0), lambda: reducer(0), lambda: p2(0), lambda: mloop(0, True, B3a), lambda: p4(0),
           lambda: mloop(1, False, B1b), lambda: p1_tail(1), lambda: reducer(1), lambda: p2(1), lambda: mloop(1, True, B3b), lambda: p4(1)]
    for f in seq[:OPT['stop']]:
        f()
    if OPT['stamps']:
        stamp('end')
        rstamp(63)
        A('s_lshl_b32 s84, s2, 2')
        A('s_add_u32 s84, s84, s%d' % sW)
        A('s_lshl_b32 s84, s84, 8')
        A('s_add_u32 s84, s84, %d' % STAMP)
        A('buffer_store_dword %s, %s, %s, s84 offen' % (V(vSTAMP), V(vL4), srd(SWS)))
    A.label('Lend')
    A('s_endpgm')
    pads = A.pad_hazards_fast()
    head = open('interleave_layers__linear_attn_block__dense_activation_relu__prompt.s.ref').read().split('\n')
    hdr = [l for l in head if l.startswith(';') and '@launch' not in l and 'Override' not in l and 'grid=ceil' not in l]
    txt = '\n'.join(hdr) + '\n'
    txt += '; @launch grid=(256,1,1) block=(256,1,1) lds=%d\n' % LDS_BYTES
    if OPT['stamps']:
        txt += '; stamps: ' + '|'.join(stamp_names) + '\n'
    txt += '.amdgcn_target "amdgcn-amd-amdhsa--gfx950"\n.text\n.globl %s\n.p2align 8\n.type %s,@function\n%s:\n' % (KNAME, KNAME, KNAME)
    txt += A.text()
    txt += '''.section .rodata,"a"
.p2align 6
.amdhsa_kernel %s
  .amdhsa_next_free_vgpr 512
  .amdhsa_next_free_sgpr 102
  .amdhsa_accum_offset 256
  .amdhsa_group_segment_fixed_size 0
  .amdhsa_kernarg_size 72
  .amdhsa_user_sgpr_count 2
  .amdhsa_user_sgpr_kernarg_segment_ptr 1
  .amdhsa_system_sgpr_workgroup_id_x 1
.end_amdhsa_kernel
''' % KNAME
    open(out, 'w').write(txt)
    n = sum(1 for i in A.ins if i.kind not in ('label', 'dir'))
    print('instructions', n, 'hazard pad states', pads, file=sys.stderr)


main()
```
